```python
import torch

def _softmax(x, axis=-1):
    return torch.softmax(x, dim=axis)
def _gelu(x):
    return torch.nn.functional.gelu(x, approximate="tanh")
def _silu(x):
    return torch.nn.functional.silu(x)
def _sigmoid(x):
    return torch.sigmoid(x)
def _layernorm(x, axis=-1, eps=1e-5):
    m = x.mean(dim=axis, keepdim=True)
    v = x.var(dim=axis, keepdim=True, unbiased=False)
    return (x - m) / torch.sqrt(v + eps)
def _scatter_add(tgt, idx, src, axis=0):
    return tgt.clone().index_add_(axis, idx, src)
def _segment_sum(src, seg, n):
    out = torch.zeros((n,) + src.shape[1:], dtype=src.dtype)
    return out.index_add_(0, seg, src)
def _pad(x, pw):
    flat = tuple(v for pair in reversed(pw) for v in pair)
    return torch.nn.functional.pad(x, flat)

kernel_name = 'standalone__mha_block_cached__near_ridge'

def setup_inputs():

    _w = (lambda a: (lambda t: t.to(torch.bfloat16) if t.is_floating_point() else t)(torch.as_tensor(a)))
    B, Sq, D = 8, 128, 512
    H, Sk, Dh = 32, 2048, 128
    return {
        "x": _w((lambda *s: torch.randn(*s, dtype=torch.bfloat16) * 0.8)(B, Sq, D)),
        "k_cache": _w((lambda *s: torch.randn(*s, dtype=torch.bfloat16) * 0.8)(B, H, Sk, Dh)),
        "v_cache": _w((lambda *s: torch.randn(*s, dtype=torch.bfloat16) * 0.05)(B, H, Sk, Dh)),
        "wq": _w((lambda *s: torch.randn(*s, dtype=torch.bfloat16) * 0.8)(D, H * Dh) * (D ** -0.5)),
        "wo": _w((lambda *s: torch.randn(*s, dtype=torch.bfloat16) * 0.05)(H * Dh, D) * ((H * Dh) ** -0.5)),
    }

def reference(x, k_cache, v_cache, wq, wo):
    B, Sq, D = x.shape
    H, Dh = 32, 128
    q = (lambda x, *d: x.permute(*d))((x @ wq).reshape(B, Sq, H, Dh), 0, 2, 1, 3)
    scores = torch.einsum("bhqd,bhkd->bhqk", q, k_cache) * (Dh ** -0.5)
    p = _softmax(scores, axis=-1)
    o = torch.einsum("bhqk,bhkd->bhqd", p, v_cache)
    return (lambda x, *d: x.permute(*d))(o, 0, 2, 1, 3).reshape(B, Sq, H * Dh) @ wo
```

```python
import copy


def R(kind, base, n=1):
    names = ["%s%d" % (kind, base + i) for i in range(n)]
    if n == 1:
        return ("%s%d" % (kind, base), names)
    return ("%s[%d:%d]" % (kind, base, base + n - 1), names)


def V(base, n=1):
    return R("v", base, n)


def A(base, n=1):
    return R("a", base, n)


def S(base, n=1):
    return R("s", base, n)


class Emit:
    def __init__(self):
        self.lines = []
        self.pos = 0
        self.valu_w = {}
        self.trans_w = {}
        self.mfma_w = {}
        self.mfma_c = {}
        self.store_d = {}
        self.sgpr_valu_w = {}
        self.m0_w = -100
        self.ldsq = []
        self.nops = 0
        self.count = {}

    def snapshot(self):
        st = {}
        for name in ("valu_w", "trans_w", "store_d", "sgpr_valu_w"):
            d = getattr(self, name)
            st[name] = {r: self.pos - p for r, p in d.items() if self.pos - p < 32}
        st["mfma_w"] = {r: (self.pos - p, k, d) for r, (p, k, d) in self.mfma_w.items() if self.pos - p < 32}
        st["mfma_c"] = {r: (self.pos - p, k) for r, (p, k) in self.mfma_c.items() if self.pos - p < 32}
        st["m0"] = self.pos - self.m0_w
        assert not self.ldsq, "LDS queue must be empty at snapshot"
        return st

    def merge(self, st):
        for name in ("valu_w", "trans_w", "store_d", "sgpr_valu_w"):
            d = getattr(self, name)
            for r, age in st[name].items():
                d[r] = max(d.get(r, -1000), self.pos - age)
        for r, (age, k, dd) in st["mfma_w"].items():
            cur = self.mfma_w.get(r)
            if cur is None or cur[0] < self.pos - age:
                if cur is not None and cur[2] != dd and self.pos - cur[0] < 32:
                    dd = ()
                self.mfma_w[r] = (self.pos - age, k, dd)
            elif cur[2] != dd:
                self.mfma_w[r] = (cur[0], cur[1], ())
        for r, (age, k) in st["mfma_c"].items():
            cur = self.mfma_c.get(r)
            if cur is None or cur[0] < self.pos - age:
                self.mfma_c[r] = (self.pos - age, k)
        self.m0_w = max(self.m0_w, self.pos - st["m0"])

    def raw(self, text, states=1):
        self.lines.append("    " + text)
        self.pos += states

    def label(self, name):
        self.lines.append(name + ":")

    def comment(self, text):
        self.lines.append("    ; " + text)

    def nop(self, n):
        while n > 0:
            k = min(n, 16)
            self.lines.append("    s_nop %d" % (k - 1))
            self.pos += k
            self.nops += 1
            n -= k

    def lgkm0(self):
        if True:
            self.raw("s_waitcnt lgkmcnt(0)")
        self.ldsq = []

    def _lds_wait(self, regs):
        regs = set(regs)
        idx = -1
        for i, d in enumerate(self.ldsq):
            if d & regs:
                idx = i
        if idx >= 0:
            n = len(self.ldsq) - idx - 1
            n = min(n, 15)
            self.raw("s_waitcnt lgkmcnt(%d)" % n)
            self.ldsq = self.ldsq[len(self.ldsq) - n:] if n > 0 else []

    def ins(self, text, kind, dst=(), src=(), srcC=(), passes=8):
        dst = list(dst)
        src = list(src)
        srcC = list(srcC)
        allregs = dst + src + srcC
        self._lds_wait(allregs)
        need = self.pos
        isvalu = kind in ("valu", "trans", "perm", "rfl")

        def req(p, n):
            nonlocal need
            need = max(need, p + n + 1)

        tab_valu = {8: 12, 4: 8}
        tab_ab = {8: 12, 4: 8}
        tab_c = {8: 10, 4: 6}
        tab_war = {8: 7, 4: 3}
        for r in set(allregs):
            mw = self.mfma_w.get(r)
            if mw is not None:
                p, k, d = mw
                if kind == "mfma":
                    if r in srcC:
                        if tuple(srcC) == d and k == passes:
                            pass
                        else:
                            req(p, tab_c[k])
                    if r in src:
                        req(p, tab_ab[k])
                elif kind != "salu":
                    req(p, tab_valu[k])
        for r in set(src + srcC):
            vw = self.valu_w.get(r)
            if vw is not None:
                if kind == "mfma":
                    req(vw, 2)
                elif kind == "perm":
                    req(vw, 2)
                elif kind == "rfl":
                    req(vw, 1)
            tw = self.trans_w.get(r)
            if tw is not None and kind in ("valu", "perm", "rfl"):
                req(tw, 1)
            sw = self.sgpr_valu_w.get(r)
            if sw is not None:
                if isvalu or kind == "mfma":
                    req(sw, 2)
                elif kind.startswith("vmem"):
                    req(sw, 5)
        if kind == "perm":
            for r in dst:
                vw = self.valu_w.get(r)
                if vw is not None:
                    req(vw, 2)
        for r in dst:
            mc = self.mfma_c.get(r)
            if mc is not None and isvalu:
                req(mc[0], tab_war[mc[1]])
            sd = self.store_d.get(r)
            if sd is not None:
                req(sd, 2)
        if kind == "vmem_dma":
            req(self.m0_w, 1)
        if need > self.pos:
            self.nop(need - self.pos)
        at = self.pos
        self.raw(text)
        self.count[kind] = self.count.get(kind, 0) + 1
        for r in dst:
            self.valu_w.pop(r, None)
            self.trans_w.pop(r, None)
            self.mfma_w.pop(r, None)
            self.sgpr_valu_w.pop(r, None)
        if isvalu:
            for r in dst:
                if r[0] in "va":
                    self.valu_w[r] = at
                    if kind == "trans":
                        self.trans_w[r] = at
                else:
                    self.sgpr_valu_w[r] = at
        elif kind == "mfma":
            for r in dst:
                self.mfma_w[r] = (at, passes, tuple(dst))
            for r in srcC:
                self.mfma_c[r] = (at, passes)
        elif kind == "ds_r":
            self.ldsq.append(set(dst))
        elif kind == "ds_w":
            self.ldsq.append(set())
        elif kind == "vmem_w":
            for r in src:
                self.store_d[r] = at
        elif kind == "salu":
            if "m0" in dst:
                self.m0_w = at

    @staticmethod
    def _t(x):
        return x[0] if isinstance(x, tuple) else str(x)

    @staticmethod
    def _r(x):
        return x[1] if isinstance(x, tuple) else []

    def valu(self, op, d, *srcs, kind="valu"):
        text = "%s %s, %s" % (op, self._t(d), ", ".join(self._t(s) for s in srcs))
        src = []
        for s in srcs:
            src += self._r(s)
        self.ins(text, kind, dst=self._r(d), src=src)

    def trans(self, op, d, s):
        self.valu(op, d, s, kind="trans")

    def salu(self, op, d, *srcs):
        text = "%s %s, %s" % (op, self._t(d), ", ".join(self._t(s) for s in srcs))
        dd = self._r(d) if isinstance(d, tuple) else ([d] if d == "m0" else [])
        self.ins(text, "salu", dst=dd)

    def mfma(self, d, a, b, c):
        text = "v_mfma_f32_32x32x16_bf16 %s, %s, %s, %s" % (d[0], a[0], b[0], self._t(c))
        self.ins(text, "mfma", dst=d[1], src=a[1] + b[1], srcC=self._r(c), passes=8)

    def ds_read(self, op, d, addr, off):
        assert 0 <= off < 65536, off
        text = "%s %s, %s offset:%d" % (op, d[0], addr[0], off)
        self.ins(text, "ds_r", dst=d[1], src=addr[1])

    def ds_write(self, op, addr, data, off):
        assert 0 <= off < 65536, off
        text = "%s %s, %s offset:%d" % (op, addr[0], data[0], off)
        self.ins(text, "ds_w", src=addr[1] + data[1])

    def buf_load(self, op, d, voff, srd, soff, off, flags=""):
        assert 0 <= off < 4096
        text = "%s %s, %s, %s, %s offen offset:%d%s" % (op, d[0], voff[0], srd[0], self._t(soff), off, (" " + flags) if flags else "")
        self.ins(text, "vmem_r", dst=d[1], src=voff[1] + srd[1] + self._r(soff))

    def buf_dma(self, voff, srd, soff, off, flags=""):
        assert 0 <= off < 4096
        text = "buffer_load_dwordx4 %s, %s, %s offen offset:%d%s lds" % (voff[0], srd[0], self._t(soff), off, (" " + flags) if flags else "")
        self.ins(text, "vmem_dma", src=voff[1] + srd[1] + self._r(soff))

    def buf_store(self, op, data, voff, srd, soff, off, flags=""):
        assert 0 <= off < 4096
        text = "%s %s, %s, %s, %s offen offset:%d%s" % (op, data[0], voff[0], srd[0], self._t(soff), off, (" " + flags) if flags else "")
        self.ins(text, "vmem_w", src=data[1] + voff[1] + srd[1] + self._r(soff))

    def vmcnt(self, n):
        self.raw("s_waitcnt vmcnt(%d)" % min(n, 63))

    def barrier(self):
        assert not self.ldsq, "LDS ops outstanding at barrier"
        self.raw("s_barrier")

    def text(self):
        return "\n".join(self.lines) + "\n"
```

```python
import sys
import struct
import math
from emit import Emit, V, A, S

NAME = "standalone__mha_block_cached__near_ridge"

HEADER = """; Kernarg layout for this problem (64 bytes, ptrs only, base s[0:1]):
"""


def f32bits(x):
    return struct.unpack("<I", struct.pack("<f", x))[0]


SCALE = (128 ** -0.5) * math.log2(math.e)
THRESH = 8.0

vKA = 1
vVA = 9
vKD = 13
vVD = 17
vL0, vL1 = 18, 19
vT = 20
vQ = 32
vO = 64
vS = 128
vC = 192
vKF = 208
vVF = 232
NKF = 6
NVF = 6

sK, sV, sX, sWQ, sWS = 20, 24, 28, 32, 36
sB, sH, sW, sCNT, sKOFF, sVOFF, sM0W, sTMP, sTMP2 = 40, 41, 42, 43, 44, 45, 46, 47, 48

LDS_K = 0
LDS_V = 65536
LDS_W = 131072


class Opt:
    nt = False
    compute = True


def prologue_common(e):
    e.raw("s_cmp_ge_u32 s2, 256")
    e.raw("s_cbranch_scc1 L_done")
    e.raw("s_load_dwordx16 s[4:19], s[0:1], 0")
    e.valu("v_lshrrev_b32", V(vT), 6, V(0))
    e.ins("v_readfirstlane_b32 s%d, v%d" % (sW, vT), "rfl", dst=["s%d" % sW], src=["v%d" % vT])


def gen_attention(o):
    e = Emit()
    dflag = "nt" if o.nt else ""
    prologue_common(e)
    e.raw("s_and_b32 s%d, s2, 1" % sB)
    e.raw("s_lshl_b32 s%d, s%d, 2" % (sB, sB))
    e.raw("s_bfe_u32 s%d, s2, 0x20003" % sTMP)
    e.raw("s_add_u32 s%d, s%d, s%d" % (sB, sB, sTMP))
    e.raw("s_bfe_u32 s%d, s2, 0x20001" % sH)
    e.raw("s_lshl_b32 s%d, s%d, 3" % (sH, sH))
    e.raw("s_lshr_b32 s%d, s2, 5" % sTMP)
    e.raw("s_add_u32 s%d, s%d, s%d" % (sH, sH, sTMP))
    lane = V(vT + 1)
    e.valu("v_and_b32", lane, 63, V(0))
    t_i4 = V(vT + 2)
    t_i15 = V(vT + 3)
    t_hf = V(vT + 4)
    t_k31 = V(vT + 5)
    t_a = V(vT + 6)
    t_b = V(vT + 7)
    t_r = V(vT + 8)
    t_cc = V(vT + 9)
    t_ds = V(vT + 10)
    t_w16 = V(vT + 11)
    e.valu("v_lshrrev_b32", t_i4, 4, lane)
    e.valu("v_and_b32", t_i15, 15, lane)
    e.valu("v_lshrrev_b32", t_hf, 5, lane)
    e.valu("v_and_b32", t_k31, 31, lane)
    e.valu("v_lshrrev_b32", t_r, 2, t_i15)
    e.valu("v_and_b32", t_cc, 3, lane)
    e.valu("v_and_b32", t_ds, 1, t_i4)
    e.raw("s_lshl_b32 s%d, s%d, 4" % (sTMP, sW))
    e.valu("v_add_u32", t_w16, S(sTMP), t_i4)
    e.raw("s_lshl_b32 s%d, s%d, 12" % (sM0W, sW))
    for j in range(4):
        e.valu("v_add_u32", t_a, 4 * j, t_i4)
        e.valu("v_xor_b32", t_a, t_a, t_i15)
        e.valu("v_lshlrev_b32", t_a, 4, t_a)
        e.valu("v_lshl_add_u32", V(vKD + j), t_w16, 8, t_a)
    e.valu("v_lshlrev_b32", t_a, 2, t_i4)
    e.valu("v_xor_b32", t_a, t_a, t_i15)
    e.valu("v_lshlrev_b32", t_a, 4, t_a)
    e.valu("v_lshl_add_u32", V(vVD), t_w16, 8, t_a)
    for s in range(8):
        e.valu("v_or_b32", t_a, 2 * s, t_hf)
        e.valu("v_xor_b32", t_a, t_a, t_i15)
        e.valu("v_lshlrev_b32", t_a, 4, t_a)
        e.valu("v_lshl_add_u32", V(vKA + s), t_k31, 8, t_a)
    for db in range(4):
        e.valu("v_xor_b32", t_a, db, t_r)
        e.valu("v_lshlrev_b32", t_a, 1, t_a)
        e.valu("v_add_u32", t_a, t_a, t_ds)
        e.valu("v_lshlrev_b32", t_a, 1, t_a)
        e.valu("v_lshrrev_b32", t_b, 1, t_cc)
        e.valu("v_add_u32", t_a, t_a, t_b)
        e.valu("v_lshlrev_b32", t_a, 4, t_a)
        e.valu("v_and_b32", t_b, 1, t_cc)
        e.valu("v_lshl_add_u32", t_a, t_b, 3, t_a)
        e.valu("v_lshl_add_u32", t_b, t_hf, 2, t_r)
        e.valu("v_lshl_add_u32", t_a, t_b, 8, t_a)
        e.valu("v_add_u32", V(vVA + db), LDS_V, t_a)
    vWQA = vS
    vWW = vS + 4
    vWQL = vS + 5
    vXL = vS + 6
    for db in range(4):
        e.valu("v_xor_b32", t_a, db, t_r)
        e.valu("v_lshlrev_b32", t_a, 1, t_a)
        e.valu("v_add_u32", t_a, t_a, t_ds)
        e.valu("v_lshlrev_b32", t_a, 1, t_a)
        e.valu("v_and_b32", t_b, 1, t_cc)
        e.valu("v_add_u32", t_a, t_a, t_b)
        e.valu("v_lshlrev_b32", t_a, 4, t_a)
        e.valu("v_lshrrev_b32", t_b, 1, t_cc)
        e.valu("v_lshl_add_u32", t_a, t_b, 3, t_a)
        e.valu("v_lshl_add_u32", t_b, t_hf, 3, t_r)
        e.valu("v_lshl_add_u32", t_a, t_b, 8, t_a)
        e.valu("v_add_u32", V(vWQA + db), LDS_W, t_a)
    e.valu("v_add_u32", V(vWW), LDS_W, V(vVD))
    e.valu("v_lshlrev_b32", t_a, 4, t_i15)
    e.valu("v_lshl_add_u32", V(vWQL), t_w16, 13, t_a)
    e.raw("s_lshl_b32 s%d, s%d, 5" % (sTMP, sW))
    e.valu("v_add_u32", t_a, S(sTMP), t_k31)
    e.valu("v_lshlrev_b32", t_b, 4, t_hf)
    e.valu("v_lshl_add_u32", V(vXL), t_a, 10, t_b)
    e.raw("s_waitcnt lgkmcnt(0)")
    e.raw("s_lshl_b32 s%d, s%d, 5" % (sTMP, sB))
    e.raw("s_add_u32 s%d, s%d, s%d" % (sTMP, sTMP, sH))
    e.raw("s_lshl_b32 s%d, s%d, 19" % (sTMP2, sTMP))
    e.raw("s_add_u32 s%d, s6, s%d" % (sK, sTMP2))
    e.raw("s_addc_u32 s%d, s7, 0" % (sK + 1))
    e.raw("s_mov_b32 s%d, 0x80000" % (sK + 2))
    e.raw("s_mov_b32 s%d, 0x20000" % (sK + 3))
    e.raw("s_add_u32 s%d, s8, s%d" % (sV, sTMP2))
    e.raw("s_addc_u32 s%d, s9, 0" % (sV + 1))
    e.raw("s_mov_b32 s%d, 0x80000" % (sV + 2))
    e.raw("s_mov_b32 s%d, 0x20000" % (sV + 3))
    e.raw("s_lshl_b32 s%d, s%d, 17" % (sTMP2, sB))
    e.raw("s_add_u32 s%d, s4, s%d" % (sX, sTMP2))
    e.raw("s_addc_u32 s%d, s5, 0" % (sX + 1))
    e.raw("s_mov_b32 s%d, 0x20000" % (sX + 2))
    e.raw("s_mov_b32 s%d, 0x20000" % (sX + 3))
    e.raw("s_lshl_b32 s%d, s%d, 8" % (sTMP2, sH))
    e.raw("s_add_u32 s%d, s10, s%d" % (sWQ, sTMP2))
    e.raw("s_addc_u32 s%d, s11, 0" % (sWQ + 1))
    e.raw("s_sub_u32 s%d, 0x400000, s%d" % (sWQ + 2, sTMP2))
    e.raw("s_mov_b32 s%d, 0x20000" % (sWQ + 3))
    e.raw("s_lshl_b32 s%d, s%d, 2" % (sTMP2, sB))
    e.raw("s_add_u32 s%d, s%d, s%d" % (sTMP2, sTMP2, sW))
    e.raw("s_lshl_b32 s%d, s%d, 5" % (sTMP2, sTMP2))
    e.raw("s_add_u32 s%d, s%d, s%d" % (sTMP2, sTMP2, sH))
    e.raw("s_lshl_b32 s%d, s%d, 13" % (sTMP2, sTMP2))
    e.raw("s_add_u32 s%d, s18, s%d" % (sWS, sTMP2))
    e.raw("s_addc_u32 s%d, s19, 0" % (sWS + 1))
    e.raw("s_mov_b32 s%d, 0x2000" % (sWS + 2))
    e.raw("s_mov_b32 s%d, 0x20000" % (sWS + 3))

    srdK, srdV, srdX, srdWQ, srdWS = (S(x, 4) for x in (sK, sV, sX, sWQ, sWS))

    if o.compute:
        for r in range(8):
            for j in range(4):
                e.raw("s_mov_b32 s%d, 0x%x" % (sTMP, (64 * r + 4 * j) * 8192))
                e.buf_load("buffer_load_dwordx4", A(16 * r + 4 * j, 4), V(vWQL), srdWQ, S(sTMP), 0)
            for j in range(4):
                ee = 4 * r + j
                e.buf_load("buffer_load_dwordx4", A(128 + 4 * ee, 4), V(vXL), srdX, 0, ee * 32)

    def dmaK(slot, soff):
        e.salu("s_add_u32", "m0", S(sM0W), LDS_K + slot * 16384)
        for j in range(4):
            e.buf_dma(V(vKD + j), srdK, soff, j * 1024, dflag)

    def dmaV(slot, soff):
        e.salu("s_add_u32", "m0", S(sM0W), LDS_V + slot * 16384)
        for j in range(4):
            e.buf_dma(V(vVD), srdV, soff, j * 1024, dflag)

    init = [("K", 0), ("K", 1), ("V", 0), ("K", 2), ("V", 1), ("K", 3), ("V", 2)]
    for kind, t in init:
        e.raw("s_mov_b32 s%d, 0x%x" % (sTMP, t * 16384))
        (dmaK if kind == "K" else dmaV)(t % 4, S(sTMP))
    e.raw("s_mov_b32 s%d, 0x%x" % (sKOFF, 4 * 16384))
    e.raw("s_mov_b32 s%d, 0x%x" % (sVOFF, 3 * 16384))
    TOT = 64 + 28

    if o.compute:
        def wq_write(r):
            e.vmcnt(TOT - (8 * r + 4))
            for j in range(4):
                e.ds_write("ds_write_b128", V(vWW), A(16 * r + 4 * j, 4), (r & 1) * 16384 + j * 1024)

        wq_write(0)
        e.lgkm0()
        e.barrier()
        for r in range(8):
            if r < 7:
                wq_write(r + 1)
            e.vmcnt(TOT - (8 * r + 8))
            items = [(ee, db) for ee in range(4) for db in range(4)]

            def rd(i):
                ee, db = items[i]
                fr = vVF + 4 * (i % NVF)
                for u in range(2):
                    e.ds_read("ds_read_b64_tr_b16", V(fr + 2 * u, 2), V(vWQA + db),
                              (r & 1) * 16384 + (16 * ee + 4 * u) * 256)
            for i in range(NVF):
                rd(i)
            for i, (ee, db) in enumerate(items):
                fr = vVF + 4 * (i % NVF)
                first = (r == 0 and ee == 0)
                e.mfma(V(vO + 16 * db, 16), V(fr, 4), A(128 + 4 * (4 * r + ee), 4),
                       0 if first else V(vO + 16 * db, 16))
                if i + NVF < 16:
                    rd(i + NVF)
            e.lgkm0()
            e.barrier()
        e.raw("s_mov_b32 s%d, 0x%x" % (sTMP, f32bits(SCALE)))
        for db in range(4):
            for r in range(0, 16, 2):
                a, b = V(vO + 16 * db + r), V(vO + 16 * db + r + 1)
                e.valu("v_mul_f32", a, S(sTMP), a)
                e.valu("v_mul_f32", b, S(sTMP), b)
                e.valu("v_cvt_pk_bf16_f32", V(vQ + 8 * db + r // 2), a, b)
        for i in range(64):
            e.valu("v_mov_b32", V(vO + i), 0)
        e.valu("v_mov_b32", V(vL0), 0)
        e.valu("v_mov_b32", V(vL1), 0)

    def kread(slot, i):
        kb, s = divmod(i, 8)
        e.ds_read("ds_read_b128", V(vKF + 4 * (i % NKF), 4), V(vKA + s), LDS_K + slot * 16384 + kb * 8192)

    def vread(slot, j):
        ks, db = divmod(j, 4)
        fr = vVF + 4 * (j % NVF)
        for u in range(2):
            e.ds_read("ds_read_b64_tr_b16", V(fr + 2 * u, 2), V(vVA + db), slot * 16384 + (16 * ks + 8 * u) * 256)

    def qk_mfma(sb, i, cinit):
        kb, s = divmod(i, 8)
        d = V(sb + 16 * kb, 16)
        c = d if s > 0 else cinit
        e.mfma(d, V(vKF + 4 * (i % NKF), 4), V(vQ + 4 * s, 4), c)

    def pv_mfma(sb, j):
        ks, db = divmod(j, 4)
        p = V(sb + 8 * ks, 4)
        d = V(vO + 16 * db, 16)
        e.mfma(d, V(vVF + 4 * (j % NVF), 4), p, d)

    def softmax_ops(sb, ks):
        b = sb + 8 * ks
        ex = lambda i: (2, lambda: e.trans("v_exp_f32", V(b + i), V(b + i)))
        ad = lambda i: (1, lambda: e.valu("v_add_f32", V(vL0 + (i & 1)), V(vL0 + (i & 1)), V(b + i)))
        cv = lambda k: (1, lambda: e.valu("v_cvt_pk_bf16_f32", V(b + k), V(b + 2 * k), V(b + 2 * k + 1)))
        return [ex(0), ex(1), ex(2), ex(3), ad(0), ad(1), ex(4), ad(2), ex(5), ad(3), cv(0), ex(6), ad(4),
                ex(7), ad(5), cv(1), ad(6), ad(7), cv(2), cv(3)]

    vM = V(vT)

    def max_ops(sb, half):
        ops = []
        b = sb + 16 * half
        if half == 0:
            ops.append((1, lambda: e.valu("v_max3_f32", vM, V(b), V(b + 1), V(b + 2))))
            for k in range(3, 15, 2):
                ops.append((1, lambda k=k: e.valu("v_max3_f32", vM, vM, V(b + k), V(b + k + 1))))
            ops.append((1, lambda: e.valu("v_max_f32", vM, vM, V(b + 15))))
        else:
            for k in range(0, 16, 2):
                ops.append((1, lambda k=k: e.valu("v_max3_f32", vM, vM, V(b + k), V(b + k + 1))))
        return ops

    def full_max():
        t = V(vT + 1)
        e.valu("v_mov_b32", t, vM)
        e.ins("v_permlane32_swap_b32 %s, %s" % (vM[0], t[0]), "perm", dst=vM[1] + t[1], src=vM[1] + t[1])
        e.valu("v_max_f32", vM, vM, t)

    rare = []

    def gen_rare(lbl, ret, sb):
        e.label(lbl)
        e.nop(16)
        full_max()
        e.valu("v_max_f32", vM, 0, vM)
        f = V(vT + 2)
        e.ins("v_exp_f32 %s, -%s" % (f[0], vM[0]), "trans", dst=f[1], src=vM[1])
        for i in range(32):
            e.valu("v_sub_f32", V(sb + i), V(sb + i), vM)
        for i in range(16):
            e.valu("v_sub_f32", V(vC + i), V(vC + i), vM)
        for i in range(64):
            e.valu("v_mul_f32", V(vO + i), V(vO + i), f)
        e.valu("v_mul_f32", V(vL0), V(vL0), f)
        e.valu("v_mul_f32", V(vL1), V(vL1), f)
        e.nop(4)
        e.raw("s_branch %s" % ret)

    def tile(t4, vm, do_k, do_v, do_qk, uid):
        cur = vS + 32 * (t4 & 1)
        nxt = vS + 32 * ((t4 + 1) & 1)
        kslot = (t4 + 1) % 4
        vslot = t4 % 4
        e.vmcnt(vm)
        e.barrier()
        if o.compute and do_qk:
            for i in range(NKF):
                kread(kslot, i)
        if do_k:
            dmaK(t4 % 4, S(sKOFF))
            e.raw("s_add_u32 s%d, s%d, 0x4000" % (sKOFF, sKOFF))
        if do_v:
            dmaV((t4 + 3) % 4, S(sVOFF))
            e.raw("s_add_u32 s%d, s%d, 0x4000" % (sVOFF, sVOFF))
        if not o.compute:
            return
        vq = []
        marks = {}
        for ks in range(4):
            vq += softmax_ops(cur, ks)
            marks[ks] = len(vq)
        state = {"i": 0}

        def run_upto(n):
            while state["i"] < n:
                vq[state["i"]][1]()
                state["i"] += 1

        def run_budget(budget, lst, st):
            while st["i"] < len(lst) and budget > 0:
                c, fn = lst[st["i"]]
                fn()
                st["i"] += 1
                budget -= c

        mq0 = max_ops(nxt, 0) if do_qk else []
        mq1 = max_ops(nxt, 1) if do_qk else []
        ms0, ms1 = {"i": 0}, {"i": 0}
        if do_qk:
            run_budget(8, vq, state)
            for g in range(16):
                qk_mfma(nxt, g, V(vC, 16))
                if g + NKF < 16:
                    kread(kslot, g + NKF)
                if 6 <= g < 6 + NVF:
                    vread(vslot, g - 6)
                run_budget(4, vq, state)
                if g >= 11:
                    run_budget(2, mq0, ms0)
        else:
            for j in range(NVF):
                vread(vslot, j)
        for j in range(16):
            ks = j // 4
            run_upto(marks[ks])
            pv_mfma(cur, j)
            if j + NVF < 16:
                vread(vslot, j + NVF)
            run_budget(4, vq, state)
            if do_qk:
                run_budget(99, mq0, ms0)
                if j >= 10:
                    run_budget(2, mq1, ms1)
        assert state["i"] == len(vq)
        if do_qk:
            run_budget(99, mq1, ms1)
            e.ins("v_cmp_lt_f32 vcc, 0x%x, %s" % (f32bits(THRESH), vM[0]), "valu", dst=["vcc"], src=vM[1])
            lbl, ret = "L_rare_%s" % uid, "L_ret_%s" % uid
            e.raw("s_cbranch_vccnz %s" % lbl)
            e.label(ret)
            rare.append((lbl, ret, nxt))
        assert not e.ldsq

    if o.compute:
        e.vmcnt(24)
        e.barrier()
        for i in range(NKF):
            kread(0, i)
        for g in range(16):
            qk_mfma(vS, g, 0)
            if g + NKF < 16:
                kread(0, g + NKF)
        for c, fn in max_ops(vS, 0) + max_ops(vS, 1):
            fn()
        full_max()
        for i in range(32):
            e.valu("v_sub_f32", V(vS + i), V(vS + i), vM)
        for i in range(16):
            e.valu("v_sub_f32", V(vC + i), 0, vM)

    e.raw("s_mov_b32 s%d, 0" % sCNT)
    entry = e.snapshot()
    save = (list(e.lines), e.pos, dict(e.valu_w), dict(e.trans_w), dict(e.mfma_w), dict(e.mfma_c),
            dict(e.store_d), dict(e.sgpr_valu_w), e.m0_w, e.nops, dict(e.count))

    def body():
        e.label("L_loop")
        for t4 in range(4):
            tile(t4, 16, True, True, True, "m%d" % t4)
        e.raw("s_add_u32 s%d, s%d, 1" % (sCNT, sCNT))
        e.raw("s_cmp_lt_u32 s%d, 7" % sCNT)
        e.raw("s_cbranch_scc1 L_loop")

    body()
    back = e.snapshot()
    (e.lines, e.pos, e.valu_w, e.trans_w, e.mfma_w, e.mfma_c, e.store_d, e.sgpr_valu_w, e.m0_w, e.nops, e.count) = save
    rare.clear()
    e.merge(back)
    body()
    tile(0, 16, False, True, True, "t0")
    tile(1, 12, False, False, True, "t1")
    tile(2, 4, False, False, True, "t2")
    tile(3, 0, False, False, False, "t3")

    if o.compute:
        l = V(vL0)
        t = V(vT + 1)
        e.valu("v_add_f32", l, l, V(vL1))
        e.valu("v_mov_b32", t, l)
        e.ins("v_permlane32_swap_b32 %s, %s" % (l[0], t[0]), "perm", dst=l[1] + t[1], src=l[1] + t[1])
        e.valu("v_add_f32", l, l, t)
        e.trans("v_rcp_f32", l, l)
        vo = V(vT + 2)
        e.valu("v_and_b32", vo, 63, V(0))
        e.valu("v_lshlrev_b32", vo, 4, vo)
        for sg in range(8):
            base = vO + 8 * sg
            for k in range(8):
                e.valu("v_mul_f32", V(base + k), V(base + k), l)
            fr = vS + 4 * sg
            for k in range(4):
                e.valu("v_cvt_pk_bf16_f32", V(fr + k), V(base + 2 * k), V(base + 2 * k + 1))
            if sg == 4:
                e.valu("v_add_u32", vo, 4096, vo)
            e.buf_store("buffer_store_dwordx4", V(fr, 4), vo, srdWS, 0, (sg & 3) * 1024)
    e.label("L_done")
    e.raw("s_endpgm")
    for lbl, ret, sb in rare:
        gen_rare(lbl, ret, sb)
    return e


def gen_outproj(o):
    e = Emit()
    e.raw("s_cmp_ge_u32 s2, 256")
    e.raw("s_cbranch_scc1 L_done2")
    e.raw("s_load_dwordx16 s[4:19], s[0:1], 0")
    e.valu("v_lshrrev_b32", V(20), 6, V(0))
    e.ins("v_readfirstlane_b32 s42, v20", "rfl", dst=["s42"], src=["v20"])
    e.raw("s_and_b32 s40, s2, 3")
    e.raw("s_lshl_b32 s40, s40, 3")
    e.raw("s_bfe_u32 s47, s2, 0x30003")
    e.raw("s_add_u32 s40, s40, s47")
    e.raw("s_bfe_u32 s41, s2, 0x10002")
    e.raw("s_lshl_b32 s41, s41, 2")
    e.raw("s_lshr_b32 s47, s2, 6")
    e.raw("s_add_u32 s41, s41, s47")
    lane, t_a, t_b = V(21), V(22), V(23)
    t_hf, t_r, t_cc, t_ds, t_i3, t_p = V(24), V(25), V(26), V(27), V(28), V(29)
    e.valu("v_and_b32", lane, 63, V(0))
    e.valu("v_lshrrev_b32", t_hf, 5, lane)
    e.valu("v_bfe_u32", t_r, lane, 2, 2)
    e.valu("v_and_b32", t_cc, 3, lane)
    e.valu("v_bfe_u32", t_ds, lane, 4, 1)
    e.valu("v_lshrrev_b32", t_i3, 3, lane)
    e.valu("v_and_b32", t_p, 7, lane)
    vWD, vOL, vRA = 1, 2, 3
    e.valu("v_bfe_u32", t_a, t_i3, 1, 1)
    e.valu("v_lshlrev_b32", t_a, 2, t_a)
    e.valu("v_xor_b32", t_a, t_a, t_p)
    e.valu("v_lshlrev_b32", t_a, 4, t_a)
    e.valu("v_lshl_add_u32", V(vWD), t_i3, 10, t_a)
    e.valu("v_lshlrev_b32", V(vOL), 4, lane)
    e.raw("s_lshl_b32 s46, s42, 15")
    for nb in range(2):
        e.valu("v_lshrrev_b32", t_a, 1, t_r)
        e.valu("v_xor_b32", t_a, nb, t_a)
        e.valu("v_lshlrev_b32", t_a, 1, t_a)
        e.valu("v_add_u32", t_a, t_a, t_ds)
        e.valu("v_lshlrev_b32", t_a, 1, t_a)
        e.valu("v_lshrrev_b32", t_b, 1, t_cc)
        e.valu("v_add_u32", t_a, t_a, t_b)
        e.valu("v_lshlrev_b32", t_a, 4, t_a)
        e.valu("v_and_b32", t_b, 1, t_cc)
        e.valu("v_lshl_add_u32", t_a, t_b, 3, t_a)
        e.valu("v_lshl_add_u32", t_b, t_hf, 2, t_r)
        e.valu("v_lshl_add_u32", t_a, t_b, 7, t_a)
        e.valu("v_add_u32", V(vRA + nb), S(46), t_a)
    e.raw("s_waitcnt lgkmcnt(0)")
    e.raw("s_lshl_b32 s47, s42, 20")
    e.raw("s_lshl_b32 s48, s41, 7")
    e.raw("s_add_u32 s47, s47, s48")
    e.raw("s_add_u32 s20, s12, s47")
    e.raw("s_addc_u32 s21, s13, 0")
    e.raw("s_sub_u32 s22, 0x100000, s48")
    e.raw("s_mov_b32 s23, 0x20000")
    e.raw("s_lshl_b32 s47, s40, 18")
    e.raw("s_lshl_b32 s48, s42, 16")
    e.raw("s_add_u32 s47, s47, s48")
    e.raw("s_add_u32 s24, s18, s47")
    e.raw("s_addc_u32 s25, s19, 0")
    e.raw("s_mov_b32 s26, 0x10000")
    e.raw("s_mov_b32 s27, 0x20000")
    e.raw("s_lshl_b32 s47, s40, 15")
    e.raw("s_lshl_b32 s48, s41, 7")
    e.raw("s_add_u32 s47, s47, s48")
    e.raw("s_add_u32 s28, s14, s47")
    e.raw("s_addc_u32 s29, s15, 0")
    e.raw("s_sub_u32 s30, 0x8000, s48")
    e.raw("s_mov_b32 s31, 0x20000")
    srdW, srdO, srdOut = S(20, 4), S(24, 4), S(28, 4)
    vOF = 128
    vAcc = 64
    vFR = 32

    def load_head(hh):
        buf = hh & 1
        for sg in range(8):
            e.raw("s_mov_b32 s47, 0x%x" % (hh * 8192 + (sg // 4) * 4096))
            e.buf_load("buffer_load_dwordx4", V(vOF + 32 * buf + 4 * sg, 4), V(vOL), srdO, S(47), (sg & 3) * 1024)
        for j in range(16):
            e.salu("s_add_u32", "m0", S(46), buf * 16384 + j * 1024)
            e.raw("s_mov_b32 s47, 0x%x" % ((hh * 128 + j * 8) * 1024))
            e.buf_dma(V(vWD), srdW, S(47), 0)

    load_head(0)
    load_head(1)
    for hh in range(8):
        buf = hh & 1
        e.vmcnt(24 if hh < 7 else 0)
        items = [(sg, nb) for sg in range(8) for nb in range(2)]

        def rd(i):
            sg, nb = items[i]
            fr = vFR + 4 * (i % 6)
            for u in range(2):
                e.ds_read("ds_read_b64_tr_b16", V(fr + 2 * u, 2), V(vRA + nb), buf * 16384 + (16 * sg + 8 * u) * 128)
        for i in range(6):
            rd(i)
        for i, (sg, nb) in enumerate(items):
            d = V(vAcc + 16 * nb, 16)
            e.mfma(d, V(vFR + 4 * (i % 6), 4), V(vOF + 32 * buf + 4 * sg, 4), 0 if (hh == 0 and sg == 0) else d)
            if i + 6 < 16:
                rd(i + 6)
        if hh + 2 < 8:
            e.nop(8)
            load_head(hh + 2)
    e.lgkm0()
    e.barrier()
    wa = V(5)
    e.valu("v_add_u32", wa, S(46), V(vOL))
    for q in range(8):
        e.ds_write("ds_write_b128", wa, V(vAcc + 4 * q, 4), q * 1024)
    e.lgkm0()
    e.barrier()
    e.raw("s_lshl_b32 s47, s42, 11")
    ra = V(6)
    e.valu("v_add_u32", ra, S(47), V(vOL))
    ra2 = V(7)
    e.valu("v_add_u32", ra2, 65536, ra)
    for k in range(2):
        for ww in range(4):
            e.ds_read("ds_read_b128", V(128 + 16 * k + 4 * ww, 4), ra if ww < 2 else ra2, (ww & 1) * 32768 + k * 1024)
    for k in range(2):
        b = 128 + 16 * k
        for c in range(4):
            e.valu("v_add_f32", V(b + c), V(b + c), V(b + 4 + c))
            e.valu("v_add_f32", V(b + 8 + c), V(b + 8 + c), V(b + 12 + c))
            e.valu("v_add_f32", V(b + c), V(b + c), V(b + 8 + c))
        e.valu("v_cvt_pk_bf16_f32", V(8 + 2 * k), V(b), V(b + 1))
        e.valu("v_cvt_pk_bf16_f32", V(9 + 2 * k), V(b + 2), V(b + 3))
    e.valu("v_and_b32", t_a, 31, lane)
    e.valu("v_lshlrev_b32", t_a, 10, t_a)
    e.valu("v_lshl_add_u32", t_a, t_hf, 3, t_a)
    e.raw("s_lshl_b32 s47, s42, 5")
    e.valu("v_add_u32", t_a, S(47), t_a)
    e.buf_store("buffer_store_dwordx2", V(8, 2), t_a, srdOut, 0, 0)
    e.buf_store("buffer_store_dwordx2", V(10, 2), t_a, srdOut, 0, 16)
    e.label("L_done2")
    e.raw("s_endpgm")
    return e


def kd(name, nv, acc):
    return """.p2align 6
.amdhsa_kernel %s
  .amdhsa_next_free_vgpr %d
  .amdhsa_next_free_sgpr 64
  .amdhsa_accum_offset %d
  .amdhsa_group_segment_fixed_size 0
  .amdhsa_kernarg_size 64
  .amdhsa_user_sgpr_count 2
  .amdhsa_user_sgpr_kernarg_segment_ptr 1
  .amdhsa_system_sgpr_workgroup_id_x 1
.end_amdhsa_kernel
""" % (name, nv, acc)


def build(o):
    a = gen_attention(o)
    b = gen_outproj(o)
    out = HEADER
    out += "; @launch kernel=attn_kernel grid=(256,1,1) block=(256,1,1) lds=163840\n"
    out += "; @launch kernel=oproj_kernel grid=(256,1,1) block=(256,1,1) lds=131072\n"
    out += '.amdgcn_target "amdgcn-amd-amdhsa--gfx950"\n.text\n'
    for name, e in (("attn_kernel", a), ("oproj_kernel", b)):
        out += ".globl %s\n.p2align 8\n.type %s,@function\n%s:\n" % (name, name, name)
        out += e.text()
    out += '.section .rodata,"a"\n'
    out += kd("attn_kernel", 512, 256)
    out += kd("oproj_kernel", 256, 256)
    sys.stderr.write("attn: %s nops=%d\noproj: %s nops=%d\n" % (a.count, a.nops, b.count, b.nops))
    return out


if __name__ == "__main__":
    o = Opt()
    for arg in sys.argv[2:]:
        k, v = arg.split("=")
        setattr(o, k, bool(int(v)))
    open(sys.argv[1], "w").write(build(o))
```

```python
import copy


def R(kind, base, n=1):
    names = ["%s%d" % (kind, base + i) for i in range(n)]
    if n == 1:
        return ("%s%d" % (kind, base), names)
    return ("%s[%d:%d]" % (kind, base, base + n - 1), names)


def V(base, n=1):
    return R("v", base, n)


def A(base, n=1):
    return R("a", base, n)


def S(base, n=1):
    return R("s", base, n)


class Emit:
    def __init__(self):
        self.lines = []
        self.pos = 0
        self.valu_w = {}
        self.trans_w = {}
        self.mfma_w = {}
        self.mfma_c = {}
        self.store_d = {}
        self.sgpr_valu_w = {}
        self.m0_w = -100
        self.ldsq = []
        self.nops = 0
        self.count = {}
        self.vmq = []
        self.vmtag = None
        self.vm_log = []
        self.vm_over = None
        self.vm_total = 0

    def snapshot(self):
        st = {}
        for name in ("valu_w", "trans_w", "store_d", "sgpr_valu_w"):
            d = getattr(self, name)
            st[name] = {r: self.pos - p for r, p in d.items() if self.pos - p < 32}
        st["mfma_w"] = {r: (self.pos - p, k, d) for r, (p, k, d) in self.mfma_w.items() if self.pos - p < 32}
        st["mfma_c"] = {r: (self.pos - p, k) for r, (p, k) in self.mfma_c.items() if self.pos - p < 32}
        st["m0"] = self.pos - self.m0_w
        assert not self.ldsq, "LDS queue must be empty at snapshot"
        return st

    def merge(self, st):
        for name in ("valu_w", "trans_w", "store_d", "sgpr_valu_w"):
            d = getattr(self, name)
            for r, age in st[name].items():
                d[r] = max(d.get(r, -1000), self.pos - age)
        for r, (age, k, dd) in st["mfma_w"].items():
            cur = self.mfma_w.get(r)
            if cur is None or cur[0] < self.pos - age:
                if cur is not None and cur[2] != dd and self.pos - cur[0] < 32:
                    dd = ()
                self.mfma_w[r] = (self.pos - age, k, dd)
            elif cur[2] != dd:
                self.mfma_w[r] = (cur[0], cur[1], ())
        for r, (age, k) in st["mfma_c"].items():
            cur = self.mfma_c.get(r)
            if cur is None or cur[0] < self.pos - age:
                self.mfma_c[r] = (self.pos - age, k)
        self.m0_w = max(self.m0_w, self.pos - st["m0"])

    def raw(self, text, states=1):
        self.lines.append("    " + text)
        self.pos += states

    def label(self, name):
        self.lines.append(name + ":")

    def comment(self, text):
        self.lines.append("    ; " + text)

    def nop(self, n):
        while n > 0:
            k = min(n, 16)
            self.lines.append("    s_nop %d" % (k - 1))
            self.pos += k
            self.nops += 1
            n -= k

    def lgkm0(self):
        if True:
            self.raw("s_waitcnt lgkmcnt(0)")
        self.ldsq = []

    def _lds_wait(self, regs):
        regs = set(regs)
        idx = -1
        for i, d in enumerate(self.ldsq):
            if d & regs:
                idx = i
        if idx >= 0:
            n = len(self.ldsq) - idx - 1
            n = min(n, 15)
            self.raw("s_waitcnt lgkmcnt(%d)" % n)
            self.ldsq = self.ldsq[len(self.ldsq) - n:] if n > 0 else []

    def ins(self, text, kind, dst=(), src=(), srcC=(), passes=8):
        dst = list(dst)
        src = list(src)
        srcC = list(srcC)
        allregs = dst + src + srcC
        self._lds_wait(allregs)
        need = self.pos
        isvalu = kind in ("valu", "trans", "perm", "rfl")

        def req(p, n):
            nonlocal need
            need = max(need, p + n + 1)

        tab_valu = {8: 12, 4: 8}
        tab_ab = {8: 12, 4: 8}
        tab_c = {8: 10, 4: 6}
        tab_war = {8: 7, 4: 3}
        for r in set(allregs):
            mw = self.mfma_w.get(r)
            if mw is not None:
                p, k, d = mw
                if kind == "mfma":
                    if r in srcC:
                        if tuple(srcC) == d and k == passes:
                            pass
                        else:
                            req(p, tab_c[k])
                    if r in src:
                        req(p, tab_ab[k])
                elif kind != "salu":
                    req(p, tab_valu[k])
        for r in set(src + srcC):
            vw = self.valu_w.get(r)
            if vw is not None:
                if kind == "mfma":
                    req(vw, 2)
                elif kind == "perm":
                    req(vw, 2)
                elif kind == "rfl":
                    req(vw, 1)
            tw = self.trans_w.get(r)
            if tw is not None and kind in ("valu", "perm", "rfl"):
                req(tw, 1)
            sw = self.sgpr_valu_w.get(r)
            if sw is not None:
                if isvalu or kind == "mfma":
                    req(sw, 2)
                elif kind.startswith("vmem"):
                    req(sw, 5)
        if kind == "perm":
            for r in dst:
                vw = self.valu_w.get(r)
                if vw is not None:
                    req(vw, 2)
        for r in dst:
            mc = self.mfma_c.get(r)
            if mc is not None and isvalu:
                req(mc[0], tab_war[mc[1]])
            sd = self.store_d.get(r)
            if sd is not None:
                req(sd, 2)
        if kind == "vmem_dma":
            req(self.m0_w, 1)
        if need > self.pos:
            self.nop(need - self.pos)
        at = self.pos
        self.raw(text)
        self.count[kind] = self.count.get(kind, 0) + 1
        if kind.startswith("vmem"):
            self.vmq.append(self.vmtag)
            self.vm_total += 1
        for r in dst:
            self.valu_w.pop(r, None)
            self.trans_w.pop(r, None)
            self.mfma_w.pop(r, None)
            self.sgpr_valu_w.pop(r, None)
        if isvalu:
            for r in dst:
                if r[0] in "va":
                    self.valu_w[r] = at
                    if kind == "trans":
                        self.trans_w[r] = at
                else:
                    self.sgpr_valu_w[r] = at
        elif kind == "mfma":
            for r in dst:
                self.mfma_w[r] = (at, passes, tuple(dst))
            for r in srcC:
                self.mfma_c[r] = (at, passes)
        elif kind == "ds_r":
            self.ldsq.append(set(dst))
        elif kind == "ds_w":
            self.ldsq.append(set())
        elif kind == "vmem_w":
            for r in src:
                self.store_d[r] = at
        elif kind == "salu":
            if "m0" in dst:
                self.m0_w = at

    @staticmethod
    def _t(x):
        return x[0] if isinstance(x, tuple) else str(x)

    @staticmethod
    def _r(x):
        return x[1] if isinstance(x, tuple) else []

    def valu(self, op, d, *srcs, kind="valu"):
        text = "%s %s, %s" % (op, self._t(d), ", ".join(self._t(s) for s in srcs))
        src = []
        for s in srcs:
            src += self._r(s)
        self.ins(text, kind, dst=self._r(d), src=src)

    def trans(self, op, d, s):
        self.valu(op, d, s, kind="trans")

    def salu(self, op, d, *srcs):
        text = "%s %s, %s" % (op, self._t(d), ", ".join(self._t(s) for s in srcs))
        dd = self._r(d) if isinstance(d, tuple) else ([d] if d == "m0" else [])
        self.ins(text, "salu", dst=dd)

    def mfma(self, d, a, b, c):
        text = "v_mfma_f32_32x32x16_bf16 %s, %s, %s, %s" % (d[0], a[0], b[0], self._t(c))
        self.ins(text, "mfma", dst=d[1], src=a[1] + b[1], srcC=self._r(c), passes=8)

    def ds_read(self, op, d, addr, off):
        assert 0 <= off < 65536, off
        text = "%s %s, %s offset:%d" % (op, d[0], addr[0], off)
        self.ins(text, "ds_r", dst=d[1], src=addr[1])

    def ds_write(self, op, addr, data, off):
        assert 0 <= off < 65536, off
        text = "%s %s, %s offset:%d" % (op, addr[0], data[0], off)
        self.ins(text, "ds_w", src=addr[1] + data[1])

    def buf_load(self, op, d, voff, srd, soff, off, flags=""):
        assert 0 <= off < 4096
        text = "%s %s, %s, %s, %s offen offset:%d%s" % (op, d[0], voff[0], srd[0], self._t(soff), off, (" " + flags) if flags else "")
        self.ins(text, "vmem_r", dst=d[1], src=voff[1] + srd[1] + self._r(soff))

    def buf_dma(self, voff, srd, soff, off, flags=""):
        assert 0 <= off < 4096
        text = "buffer_load_dwordx4 %s, %s, %s offen offset:%d%s lds" % (voff[0], srd[0], self._t(soff), off, (" " + flags) if flags else "")
        self.ins(text, "vmem_dma", src=voff[1] + srd[1] + self._r(soff))

    def buf_store(self, op, data, voff, srd, soff, off, flags=""):
        assert 0 <= off < 4096
        text = "%s %s, %s, %s, %s offen offset:%d%s" % (op, data[0], voff[0], srd[0], self._t(soff), off, (" " + flags) if flags else "")
        self.ins(text, "vmem_w", src=data[1] + voff[1] + srd[1] + self._r(soff))

    def vmcnt(self, n):
        n = min(n, 63)
        self.raw("s_waitcnt vmcnt(%d)" % n)
        self.vmq = self.vmq[len(self.vmq) - n:] if n > 0 else []

    def wait_vm(self, *tags):
        idx = -1
        for i, t in enumerate(self.vmq):
            if t in tags:
                idx = i
        n = len(self.vmq) - idx - 1 if idx >= 0 else 63
        n = min(n, 63)
        self.vm_log.append(n)
        if self.vm_over is not None:
            n = min(n, self.vm_over[len(self.vm_log) - 1])
        if idx < 0 and self.vm_over is None:
            pass
        self.raw("s_waitcnt vmcnt(%d)" % n)
        if n < len(self.vmq):
            self.vmq = self.vmq[len(self.vmq) - n:] if n > 0 else []

    def barrier(self):
        assert not self.ldsq, "LDS ops outstanding at barrier"
        self.raw("s_barrier")

    def text(self):
        return "\n".join(self.lines) + "\n"
```

```python
import sys
import struct
import math
import copy
from emit import Emit, V, A, S

NAME = "standalone__mha_block_cached__near_ridge_kernel"

HEADER = """; Kernarg layout for this problem (64 bytes, ptrs only, base s[0:1]):
"""


def f32bits(x):
    return struct.unpack("<I", struct.pack("<f", x))[0]


SCALE = (128 ** -0.5) * math.log2(math.e)
THRESH = 8.0

vKA = 1
vVA = 9
vKD = 13
vVD = 17
vL0, vL1 = 18, 19
vT = 20
vWD = 23
vRA = 24
vCK = 26
vLN = 27
vQ = 32
vO = 64
vS = 128
vC = 192
vKF = 208
vVF = 232
NKF = 6
NVF = 6

sK, sV, sX, sWQ, sWS, sWO, sOI, sOUT, sFL, sDBG = 20, 24, 28, 32, 36, 64, 68, 72, 76, 80
sB, sH, sW, sCNT, sKOFF, sVOFF, sM0W, sTMP, sTMP2 = 40, 41, 42, 43, 44, 45, 46, 47, 48
sRHO, sR19, sR7, sPQ, sNT, sROT, sMASK, sTO, sM0WW = 49, 50, 51, 52, 53, 54, 55, 56, 57
sHO = 84

LDS_K = 0
LDS_V = 65536
LDS_W = 131072
FLAG_OFF = 0x1000000
STAMP_OFF = 0x4000000


class Opt:
    kf = "nt"
    vf = ""
    stamp = 0
    notile = 0
    wof = ""
    dstep = 2
    wlast = 0


class G:
    e = None


def gen(o):
    G.e = Emit()
    e = G.e
    kflag = o.kf.replace("+", " ")
    vflag = o.vf.replace("+", " ")
    woflag = o.wof.replace("+", " ")

    def raw(t):
        G.e.raw(t)

    def stamp(idx):
        if not o.stamp:
            return
        e = G.e
        assert not e.ldsq
        e.raw("s_memrealtime s[60:61]")
        e.raw("s_waitcnt lgkmcnt(0)")
        if isinstance(idx, int):
            e.raw("v_writelane_b32 v31, s60, %d" % idx)
        else:
            e.raw("s_mov_b32 m0, %s" % idx[0])
            e.raw("s_nop 4")
            e.raw("v_writelane_b32 v31, s60, m0")

    raw("s_cmp_ge_u32 s2, 256")
    raw("s_cbranch_scc1 L_done")
    raw("s_load_dwordx16 s[4:19], s[0:1], 0")
    if o.stamp:
        raw("s_memrealtime s[62:63]")
    e.valu("v_lshrrev_b32", V(vT), 6, V(0))
    e.ins("v_readfirstlane_b32 s%d, v%d" % (sW, vT), "rfl", dst=["s%d" % sW], src=["v%d" % vT])
    raw("s_and_b32 s%d, s2, 1" % sB)
    raw("s_lshl_b32 s%d, s%d, 2" % (sB, sB))
    raw("s_bfe_u32 s%d, s2, 0x20003" % sTMP)
    raw("s_add_u32 s%d, s%d, s%d" % (sB, sB, sTMP))
    raw("s_bfe_u32 s%d, s2, 0x20001" % sH)
    raw("s_lshl_b32 s%d, s%d, 3" % (sH, sH))
    raw("s_lshr_b32 s%d, s2, 5" % sTMP)
    raw("s_add_u32 s%d, s%d, s%d" % (sH, sH, sTMP))
    raw("s_lshl_b32 s%d, s%d, 1" % (sRHO, sB))
    raw("s_add_u32 s%d, s%d, s%d" % (sRHO, sRHO, sH))
    raw("s_and_b32 s%d, s2, 3" % sPQ)
    raw("s_lshl_b32 s%d, s%d, 3" % (sPQ, sPQ))
    raw("s_bfe_u32 s%d, s2, 0x30003" % sTMP)
    raw("s_add_u32 s%d, s%d, s%d" % (sPQ, sPQ, sTMP))
    raw("s_bfe_u32 s%d, s2, 0x10002" % sNT)
    raw("s_lshl_b32 s%d, s%d, 2" % (sNT, sNT))
    raw("s_lshr_b32 s%d, s2, 6" % sTMP)
    raw("s_add_u32 s%d, s%d, s%d" % (sNT, sNT, sTMP))
    raw("s_lshl_b32 s%d, s%d, 1" % (sROT, sTMP))
    for j in range(8):
        raw("s_add_u32 s%d, s%d, %d" % (sTMP, sROT, j))
        raw("s_and_b32 s%d, s%d, 7" % (sTMP, sTMP))
        raw("s_lshl_b32 s%d, s%d, 17" % (sHO + j, sTMP))
    tb = vKF
    lane = V(tb)
    t_i4, t_i15, t_hf, t_k31, t_a, t_b, t_r, t_cc, t_ds, t_w16, t_i3, t_p7 = (V(tb + 1 + i) for i in range(12))
    e.valu("v_and_b32", lane, 63, V(0))
    e.valu("v_lshrrev_b32", t_i4, 4, lane)
    e.valu("v_and_b32", t_i15, 15, lane)
    e.valu("v_lshrrev_b32", t_hf, 5, lane)
    e.valu("v_and_b32", t_k31, 31, lane)
    e.valu("v_lshrrev_b32", t_r, 2, t_i15)
    e.valu("v_and_b32", t_cc, 3, lane)
    e.valu("v_and_b32", t_ds, 1, t_i4)
    e.valu("v_lshrrev_b32", t_i3, 3, lane)
    e.valu("v_and_b32", t_p7, 7, lane)
    e.valu("v_lshlrev_b32", V(vLN), 4, lane)
    raw("s_lshl_b32 s%d, s%d, 4" % (sTMP, sW))
    e.valu("v_add_u32", t_w16, S(sTMP), t_i4)
    raw("s_lshl_b32 s%d, s%d, 12" % (sM0W, sW))
    raw("s_lshl_b32 s%d, s%d, 13" % (sM0WW, sW))
    raw("s_add_u32 s%d, s%d, 0x%x" % (sM0WW, sM0WW, LDS_W))
    vWQA = vC
    vWW = vC + 4
    vWQL = vC + 5
    vXL = vC + 6
    vXW = vC + 7
    vXR = vC + 9
    vFZ = vC + 13
    e.valu("v_lshlrev_b32", t_a, 2, t_i4)
    e.valu("v_xor_b32", t_a, t_a, t_i15)
    e.valu("v_lshlrev_b32", t_a, 4, t_a)
    e.valu("v_lshl_add_u32", V(vWQL), t_w16, 13, t_a)
    e.valu("v_lshl_add_u32", V(vVD), t_w16, 8, t_a)
    raw("s_lshl_b32 s%d, s%d, 5" % (sTMP, sW))
    e.valu("v_add_u32", t_b, S(sTMP), t_i3)
    for par in range(2):
        e.valu("v_lshrrev_b32", t_a, 1, t_i3)
        e.valu("v_add_u32", t_a, 4 * par, t_a)
        e.valu("v_xor_b32", t_a, t_a, t_p7)
        e.valu("v_lshlrev_b32", t_a, 4, t_a)
        e.valu("v_lshl_add_u32", V(vXW + par), t_b, 10, t_a)
    raw("s_waitcnt lgkmcnt(0)")
    raw("s_lshl_b32 s%d, s%d, 17" % (sTMP2, sB))
    raw("s_add_u32 s%d, s4, s%d" % (sX, sTMP2))
    raw("s_addc_u32 s%d, s5, 0" % (sX + 1))
    raw("s_mov_b32 s%d, 0x20000" % (sX + 2))
    raw("s_mov_b32 s%d, 0x20000" % (sX + 3))
    raw("s_lshl_b32 s%d, s%d, 8" % (sTMP2, sH))
    raw("s_add_u32 s%d, s10, s%d" % (sWQ, sTMP2))
    raw("s_addc_u32 s%d, s11, 0" % (sWQ + 1))
    raw("s_sub_u32 s%d, 0x400000, s%d" % (sWQ + 2, sTMP2))
    raw("s_mov_b32 s%d, 0x20000" % (sWQ + 3))
    raw("s_add_u32 s%d, s18, 0x%x" % (sFL, FLAG_OFF))
    raw("s_addc_u32 s%d, s19, 0" % (sFL + 1))
    raw("s_mov_b32 s%d, 0x1000" % (sFL + 2))
    raw("s_mov_b32 s%d, 0x20000" % (sFL + 3))
    srdK, srdV, srdX, srdWQ, srdWS, srdWO, srdOI, srdOUT, srdFL, srdDBG = (
        S(x, 4) for x in (sK, sV, sX, sWQ, sWS, sWO, sOI, sOUT, sFL, sDBG))
    raw("s_lshl_b32 s%d, s%d, 2" % (sTMP2, sB))
    raw("s_add_u32 s%d, s%d, s%d" % (sTMP2, sTMP2, sW))
    raw("s_lshl_b32 s%d, s%d, 5" % (sTMP2, sTMP2))
    raw("s_add_u32 s%d, s%d, s%d" % (sTMP2, sTMP2, sH))
    raw("s_lshl_b32 s%d, s%d, 2" % (sTMP, sTMP2))
    e.valu("v_mov_b32", V(vFZ), S(sTMP))
    e.valu("v_mov_b32", t_a, 0)
    raw("s_mov_b64 exec, 1")
    e.vmtag = "fz"
    e.buf_store("buffer_store_dword", t_a, V(vFZ), srdFL, 0, 0, "sc1")
    raw("s_mov_b64 exec, -1")
    raw("s_lshl_b32 s%d, s%d, 13" % (sTMP2, sTMP2))
    raw("s_add_u32 s%d, s18, s%d" % (sWS, sTMP2))
    raw("s_addc_u32 s%d, s19, 0" % (sWS + 1))
    raw("s_mov_b32 s%d, 0x2000" % (sWS + 2))
    raw("s_mov_b32 s%d, 0x20000" % (sWS + 3))

    XWB = [(LDS_V + 32768, LDS_V + 49152), (LDS_W + 16384, LDS_W), (LDS_K + 49152, LDS_V + 16384)]

    def xw_ops(tau):
        wq_base, x_base = XWB[tau % 3]
        ops = []

        def op(kind, j):
            def f():
                e.vmtag = ("xw", tau)
                if kind == "w":
                    if j == 0:
                        raw("s_add_u32 s%d, s%d, %d" % (sTMP, sRHO, tau))
                        raw("s_and_b32 s%d, s%d, 7" % (sTMP, sTMP))
                        raw("s_lshl_b32 s%d, s%d, 7" % (sR7, sTMP))
                    e.salu("s_add_u32", "m0", S(sM0W), wq_base + j * 1024)
                    if j:
                        raw("s_add_u32 s%d, s%d, 0x8000" % (sR19, sR19))
                    else:
                        raw("s_lshl_b32 s%d, s%d, 12" % (sR19, sR7))
                    e.buf_dma(V(vWQL), srdWQ, S(sR19), 0)
                else:
                    e.salu("s_add_u32", "m0", S(sM0W), x_base + j * 1024)
                    if j:
                        raw("s_add_u32 s%d, s%d, 0x2000" % (sR7, sR7))
                    e.buf_dma(V(vXW + (j & 1)), srdX, S(sR7), 0)
            return f
        return [op("w", j) for j in range(4)] + [op("x", j) for j in range(4)]

    def xw_dma(tau):
        for f in xw_ops(tau):
            f()

    xw_dma(0)
    xw_dma(1)

    raw("s_lshl_b32 s%d, s%d, 5" % (sTMP, sB))
    raw("s_add_u32 s%d, s%d, s%d" % (sTMP, sTMP, sH))
    raw("s_lshl_b32 s%d, s%d, 19" % (sTMP2, sTMP))
    raw("s_add_u32 s%d, s6, s%d" % (sK, sTMP2))
    raw("s_addc_u32 s%d, s7, 0" % (sK + 1))
    raw("s_mov_b32 s%d, 0x80000" % (sK + 2))
    raw("s_mov_b32 s%d, 0x20000" % (sK + 3))
    raw("s_add_u32 s%d, s8, s%d" % (sV, sTMP2))
    raw("s_addc_u32 s%d, s9, 0" % (sV + 1))
    raw("s_mov_b32 s%d, 0x80000" % (sV + 2))
    raw("s_mov_b32 s%d, 0x20000" % (sV + 3))
    for j in range(4):
        e.valu("v_add_u32", t_a, 4 * j, t_i4)
        e.valu("v_xor_b32", t_a, t_a, t_i15)
        e.valu("v_lshlrev_b32", t_a, 4, t_a)
        e.valu("v_lshl_add_u32", V(vKD + j), t_w16, 8, t_a)

    def kv_ops(kind, slot, soff_reg, t, pre=None, post=None):
        def op(j):
            def f():
                e = G.e
                e.vmtag = (kind, t)
                e.salu("s_add_u32", "m0", S(sM0W), (LDS_K if kind == "K" else LDS_V) + slot * 16384)
                if j == 0 and pre:
                    e.raw(pre)
                if kind == "K":
                    e.buf_dma(V(vKD + j), srdK, S(soff_reg), j * 1024, kflag)
                else:
                    e.buf_dma(V(vVD), srdV, S(soff_reg), j * 1024, vflag)
                if j == 3 and post:
                    e.raw(post)
            return f
        return [op(j) for j in range(4)]

    def kv_init_ops(kind, t):
        reg = sKOFF if kind == "K" else sVOFF
        return kv_ops(kind, t % 4, reg, t, pre="s_mov_b32 s%d, 0x%x" % (reg, t * 16384),
                      post="s_add_u32 s%d, s%d, 0x4000" % (reg, reg))

    def kv_init(kind, t):
        for f in kv_init_ops(kind, t):
            f()

    if o.stamp:
        raw("v_writelane_b32 v31, s62, 0")
    stamp(1)

    for s in range(8):
        e.valu("v_or_b32", t_a, 2 * s, t_hf)
        e.valu("v_xor_b32", t_a, t_a, t_i15)
        e.valu("v_lshlrev_b32", t_a, 4, t_a)
        e.valu("v_lshl_add_u32", V(vKA + s), t_k31, 8, t_a)

    def tr_addr(dst, blk, blkxor, lo_first, hfshift, rowshift, base):
        e.valu("v_xor_b32", t_a, blk, blkxor)
        e.valu("v_lshlrev_b32", t_a, 1, t_a)
        e.valu("v_add_u32", t_a, t_a, t_ds)
        e.valu("v_lshlrev_b32", t_a, 1, t_a)
        if lo_first:
            e.valu("v_lshrrev_b32", t_b, 1, t_cc)
        else:
            e.valu("v_and_b32", t_b, 1, t_cc)
        e.valu("v_add_u32", t_a, t_a, t_b)
        e.valu("v_lshlrev_b32", t_a, 4, t_a)
        if lo_first:
            e.valu("v_and_b32", t_b, 1, t_cc)
        else:
            e.valu("v_lshrrev_b32", t_b, 1, t_cc)
        e.valu("v_lshl_add_u32", t_a, t_b, 3, t_a)
        e.valu("v_lshl_add_u32", t_b, t_hf, hfshift, t_r)
        e.valu("v_lshl_add_u32", t_a, t_b, rowshift, t_a)
        e.valu("v_add_u32", dst, base, t_a)

    for db in range(4):
        tr_addr(V(vVA + db), db, t_r, True, 2, 8, LDS_V)
        tr_addr(V(vWQA + db), db, t_r, False, 3, 8, LDS_K + 49152)
    t_rh = V(tb + 13)
    e.valu("v_lshrrev_b32", t_rh, 1, t_r)
    for nb in range(2):
        tr_addr(V(vRA + nb), nb, t_rh, True, 2, 7, S(sM0WW))
    e.valu("v_bfe_u32", t_a, t_i3, 1, 1)
    e.valu("v_lshlrev_b32", t_a, 2, t_a)
    e.valu("v_xor_b32", t_a, t_a, t_p7)
    e.valu("v_lshlrev_b32", t_a, 4, t_a)
    e.valu("v_lshl_add_u32", V(vWD), t_i3, 10, t_a)
    raw("s_add_u32 s%d, s%d, 0x%x" % (sTMP, sM0W, LDS_V + 16384))
    for ee in range(4):
        e.valu("v_bfe_u32", t_b, t_k31, 1, 3)
        e.valu("v_or_b32", t_a, 2 * ee, t_hf)
        e.valu("v_xor_b32", t_a, t_a, t_b)
        e.valu("v_lshlrev_b32", t_a, 4, t_a)
        e.valu("v_lshl_add_u32", t_a, t_k31, 7, t_a)
        e.valu("v_add_u32", V(vXR + ee), S(sTMP), t_a)
    raw("s_lshl_b32 s%d, s%d, 20" % (sTMP, sW))
    raw("s_lshl_b32 s%d, s%d, 7" % (sTMP2, sNT))
    raw("s_add_u32 s%d, s%d, s%d" % (sTMP, sTMP, sTMP2))
    raw("s_add_u32 s%d, s12, s%d" % (sWO, sTMP))
    raw("s_addc_u32 s%d, s13, 0" % (sWO + 1))
    raw("s_sub_u32 s%d, 0x100000, s%d" % (sWO + 2, sTMP2))
    raw("s_mov_b32 s%d, 0x20000" % (sWO + 3))
    raw("s_lshl_b32 s%d, s%d, 15" % (sTMP, sPQ))
    raw("s_add_u32 s%d, s%d, s%d" % (sTMP, sTMP, sTMP2))
    raw("s_add_u32 s%d, s14, s%d" % (sOUT, sTMP))
    raw("s_addc_u32 s%d, s15, 0" % (sOUT + 1))
    raw("s_sub_u32 s%d, 0x8000, s%d" % (sOUT + 2, sTMP2))
    raw("s_mov_b32 s%d, 0x20000" % (sOUT + 3))
    raw("s_lshl_b32 s%d, s%d, 18" % (sTMP, sPQ))
    raw("s_lshl_b32 s%d, s%d, 16" % (sTMP2, sW))
    raw("s_add_u32 s%d, s%d, s%d" % (sTMP, sTMP, sTMP2))
    raw("s_add_u32 s%d, s18, s%d" % (sOI, sTMP))
    raw("s_addc_u32 s%d, s19, 0" % (sOI + 1))
    raw("s_mov_b32 s%d, 0x10000" % (sOI + 2))
    raw("s_mov_b32 s%d, 0x20000" % (sOI + 3))
    raw("s_mov_b32 s%d, s16" % sDBG)
    raw("s_mov_b32 s%d, s17" % (sDBG + 1))
    raw("s_mov_b32 s%d, 256" % (sDBG + 2))
    raw("s_mov_b32 s%d, 0x20000" % (sDBG + 3))

    NQ = 12
    vQF = vS
    vXF = vKF + 16
    vWQB = vS + 48
    for db in range(4):
        e.valu("v_add_u32", V(vWQB + db), LDS_W + 16384 - (LDS_K + 49152), V(vWQA + db))

    def xread(tau):
        off = XWB[tau % 3][1] - (LDS_V + 16384)
        for ee in range(4):
            e.ds_read("ds_read_b128", V(vXF + 16 * (tau & 1) + 4 * ee, 4), V(vXR + ee), off)

    def qrd(tau, i):
        ee, db = divmod(i, 4)
        fr = vQF + 4 * ((16 * tau + i) % NQ)
        base = XWB[tau % 3][0]
        if base == LDS_W + 16384:
            addr, off = V(vWQB + db), 0
        else:
            addr, off = V(vWQA + db), base - (LDS_K + 49152)
        for u in range(2):
            e.ds_read("ds_read_b64_tr_b16", V(fr + 2 * u, 2), addr, off + (16 * ee + 4 * u) * 256)

    def qmf(tau, i):
        ee, db = divmod(i, 4)
        fr = vQF + 4 * ((16 * tau + i) % NQ)
        first = (tau == 0 and ee == 0)
        e.mfma(V(vO + 16 * db, 16), V(fr, 4), V(vXF + 16 * (tau & 1) + 4 * ee, 4),
               0 if first else V(vO + 16 * db, 16))

    e.wait_vm(("xw", 0))
    e.barrier()
    stamp(46)
    xread(0)
    for i in range(8):
        qrd(0, i)
    raw("s_cmp_lg_u32 s%d, 0" % sW)
    raw("s_cbranch_scc1 L_nocount")
    e.valu("v_mov_b32", V(vT), 0)
    e.valu("v_mov_b32", V(vT + 1), 1)
    raw("s_mov_b64 exec, 1")
    raw("buffer_atomic_add v%d, v%d, s[%d:%d], 0 offen sc1" % (vT + 1, vT, sDBG, sDBG + 3))
    raw("s_mov_b64 exec, -1")
    e.label("L_nocount")
    KVS = {2: [("K", 0)], 5: [("K", 1)], 6: [("V", 0), ("K", 2)], 7: [("V", 1), ("K", 3)]}
    for tau in range(8):
        dq = xw_ops(tau + 2) if tau + 2 < 8 else []
        for kind, t in KVS.get(tau, []):
            dq += kv_init_ops(kind, t)
        pos = [int((k + 0.5) * 12 / max(len(dq), 1)) for k in range(len(dq))]
        for i in range(12):
            qmf(tau, i)
            if i < 8:
                qrd(tau, i + 8)
            while dq and pos[0] <= i:
                pos.pop(0)
                dq.pop(0)()
        assert not dq
        if tau < 7:
            e.wait_vm(("xw", tau + 1))
            e.lgkm0()
            e.barrier()
            if o.stamp > 1:
                stamp(53 + tau)
            xread(tau + 1)
            for i in range(8):
                qrd(tau + 1, i)
        for i in range(12, 16):
            qmf(tau, i)
    stamp(2)
    v2ops = kv_init_ops("V", 2)
    raw("s_mov_b32 s%d, 0x%x" % (sTMP, f32bits(SCALE)))
    for db in range(4):
        for r in range(0, 16, 2):
            a, b = V(vO + 16 * db + r), V(vO + 16 * db + r + 1)
            e.valu("v_mul_f32", a, S(sTMP), a)
            e.valu("v_mul_f32", b, S(sTMP), b)
            e.valu("v_cvt_pk_bf16_f32", V(vQ + 8 * db + r // 2), a, b)
        v2ops[db]()
    vFZ2 = 28
    e.valu("v_mov_b32", V(vFZ2), V(vFZ))

    vFA, vF = V(29), V(30)
    e.valu("v_lshrrev_b32", vFA, 4, V(vLN))
    e.valu("v_add_u32", vFA, S(sROT), vFA)
    e.valu("v_and_b32", vFA, 7, vFA)
    raw("s_lshl_b32 s%d, s%d, 5" % (sTMP, sPQ))
    raw("s_lshl_b32 s%d, s%d, 3" % (sTMP2, sW))
    raw("s_add_u32 s%d, s%d, s%d" % (sTMP, sTMP, sTMP2))
    e.valu("v_add_u32", vFA, S(sTMP), vFA)
    e.valu("v_lshlrev_b32", vFA, 2, vFA)


    def kread(slot, i):
        kb, s = divmod(i, 8)
        G.e.ds_read("ds_read_b128", V(vKF + 4 * (i % NKF), 4), V(vKA + s), LDS_K + slot * 16384 + kb * 8192)

    def vread(slot, j):
        ks, db = divmod(j, 4)
        fr = vVF + 4 * (j % NVF)
        for u in range(2):
            G.e.ds_read("ds_read_b64_tr_b16", V(fr + 2 * u, 2), V(vVA + db), slot * 16384 + (16 * ks + 8 * u) * 256)

    def qk_mfma(sb, i, cinit):
        kb, s = divmod(i, 8)
        d = V(sb + 16 * kb, 16)
        c = d if s > 0 else cinit
        G.e.mfma(d, V(vKF + 4 * (i % NKF), 4), V(vQ + 4 * s, 4), c)

    def pv_mfma(sb, j):
        ks, db = divmod(j, 4)
        p = V(sb + 8 * ks, 4)
        d = V(vO + 16 * db, 16)
        G.e.mfma(d, V(vVF + 4 * (j % NVF), 4), p, d)

    def softmax_ops(sb, ks):
        b = sb + 8 * ks
        ex = lambda i: (2, lambda: G.e.trans("v_exp_f32", V(b + i), V(b + i)))
        ad = lambda i: (1, lambda: G.e.valu("v_add_f32", V(vL0 + (i & 1)), V(vL0 + (i & 1)), V(b + i)))
        cv = lambda k: (1, lambda: G.e.valu("v_cvt_pk_bf16_f32", V(b + k), V(b + 2 * k), V(b + 2 * k + 1)))
        return [ex(0), ex(1), ex(2), ex(3), ad(0), ad(1), ex(4), ad(2), ex(5), ad(3), cv(0), ex(6), ad(4),
                ex(7), ad(5), cv(1), ad(6), ad(7), cv(2), cv(3)]

    vM = V(vT)

    def max_ops(sb, half):
        ops = []
        b = sb + 16 * half
        if half == 0:
            ops.append((1, lambda: G.e.valu("v_max3_f32", vM, V(b), V(b + 1), V(b + 2))))
            for k in range(3, 15, 2):
                ops.append((1, lambda k=k: G.e.valu("v_max3_f32", vM, vM, V(b + k), V(b + k + 1))))
            ops.append((1, lambda: G.e.valu("v_max_f32", vM, vM, V(b + 15))))
        else:
            for k in range(0, 16, 2):
                ops.append((1, lambda k=k: G.e.valu("v_max3_f32", vM, vM, V(b + k), V(b + k + 1))))
        return ops

    def full_max():
        e = G.e
        t = V(vT + 1)
        e.valu("v_mov_b32", t, vM)
        e.ins("v_permlane32_swap_b32 %s, %s" % (vM[0], t[0]), "perm", dst=vM[1] + t[1], src=vM[1] + t[1])
        e.valu("v_max_f32", vM, vM, t)

    rare = []

    def gen_rare(lbl, ret, sb):
        e = G.e
        e.label(lbl)
        e.nop(16)
        full_max()
        e.valu("v_max_f32", vM, 0, vM)
        f = V(vT + 2)
        e.ins("v_exp_f32 %s, -%s" % (f[0], vM[0]), "trans", dst=f[1], src=vM[1])
        for i in range(32):
            e.valu("v_sub_f32", V(sb + i), V(sb + i), vM)
        for i in range(16):
            e.valu("v_sub_f32", V(vC + i), V(vC + i), vM)
        for i in range(64):
            e.valu("v_mul_f32", V(vO + i), V(vO + i), f)
        e.valu("v_mul_f32", V(vL0), V(vL0), f)
        e.valu("v_mul_f32", V(vL1), V(vL1), f)
        e.nop(4)
        e.raw("s_branch %s" % ret)

    def wo_ops(m0base_sgpr, m0_imm, soff_sgpr, row0, n, tag):
        def op(i):
            def f():
                e = G.e
                e.vmtag = tag
                e.salu("s_add_u32", "m0", S(m0base_sgpr), m0_imm + i * 1024)
                e.raw("s_add_u32 s%d, s%d, 0x%x" % (sTMP, soff_sgpr, (row0 + 8 * i) * 1024))
                e.buf_dma(V(vWD), srdWO, S(sTMP), 0, woflag)
            return f
        return [op(i) for i in range(n)]

    def wo_step_reads(step):
        e = G.e
        j, half = step >> 1, step & 1
        for sg in range(4):
            for nb in range(2):
                for u in range(2):
                    e.ds_read("ds_read_b64_tr_b16", A(64 * j + 8 * (4 * half + sg) + 4 * nb + 2 * u, 2),
                              V(vRA + nb), (16 * sg + 8 * u) * 128)

    QREG = [LDS_K + 0, LDS_K + 16384, LDS_V + 0, LDS_K + 32768, LDS_V + 16384, LDS_K + 49152, LDS_V + 32768, None]

    def quarter_ops(q, jbase, tag):
        j = jbase + (q >> 2)
        if QREG[q] is None:
            return wo_ops(sM0WW, 0, sHO + j, 32 * (q & 3), 4, tag)
        return wo_ops(sM0W, QREG[q], sHO + j, 32 * (q & 3), 4, tag)

    def quarter_dma(q, jbase, tag):
        for f in quarter_ops(q, jbase, tag):
            f()

    def tile(t, mode, uid):
        e = G.e
        t4 = t % 4
        do_k = t + 4 <= 31
        do_v = t + 3 <= 31
        do_qk = t + 1 <= 31
        cur = vS + 32 * (t4 & 1)
        nxt = vS + 32 * ((t4 + 1) & 1)
        kslot = (t4 + 1) % 4
        vslot = t4 % 4
        vq = []
        marks = {}
        for ks in range(4):
            vq += softmax_ops(cur, ks)
            marks[ks] = len(vq)
        state = {"i": 0}

        def run_upto(n):
            while state["i"] < n:
                vq[state["i"]][1]()
                state["i"] += 1

        def run_budget(budget, lst, st):
            while st["i"] < len(lst) and budget > 0:
                c, fn = lst[st["i"]]
                fn()
                st["i"] += 1
                budget -= c

        if t == 31:
            run_upto(len(vq))
        if o.stamp:
            e.raw("s_add_u32 s59, s59, 1")
        tags = [("K", t + 1), ("V", t)]
        if t4 == 3:
            tags.append(("W", t // 4))
        if t == 31:
            tags.append("cnt")
        e.wait_vm(*tags)
        e.barrier()
        if not o.notile:
            stamp(S(59))
        if t4 == 3:
            if mode == "loop":
                for k in range(7):
                    e.raw("s_cmp_eq_u32 s%d, %d" % (sCNT, k))
                    e.raw("s_cbranch_scc1 L_wrd_%d" % k)
                e.label("L_wrd_ret")
            else:
                wo_step_reads(7)
                e.ldsq = []
                e.raw("s_mov_b32 s%d, 0x20000" % sTO)
                e.label("L_cnt")
                e.ins("v_readfirstlane_b32 s%d, v%d" % (sTMP, vCK), "rfl", dst=["s%d" % sTMP], src=["v%d" % vCK])
                e.raw("s_cmp_eq_u32 s%d, 256" % sTMP)
                e.raw("s_cbranch_scc1 L_cnt_ok")
                e.raw("s_sleep 2")
                e.valu("v_mov_b32", V(vCK), 0)
                e.raw("buffer_load_dword v%d, v%d, s[%d:%d], 0 offen sc1" % (vCK, vCK, sDBG, sDBG + 3))
                e.raw("s_waitcnt vmcnt(0)")
                e.raw("s_sub_u32 s%d, s%d, 1" % (sTO, sTO))
                e.raw("s_cmp_lg_u32 s%d, 0" % sTO)
                e.raw("s_cbranch_scc1 L_cnt")
                e.raw("s_branch L_done")
                e.label("L_cnt_ok")
                e.vmtag = "poll"
                e.buf_load("buffer_load_dword", vF, vFA, srdFL, 0, 0, "sc1")
        if do_qk:
            for i in range(NKF):
                kread(kslot, i)
        dq = []
        if t4 == 0:
            if mode == "loop":
                e.raw("s_lshr_b32 s%d, s%d, 1" % (sTMP2, sCNT))
                e.raw("s_add_u32 s%d, s%d, s%d" % (sTMP2, sTMP2, sROT))
                e.raw("s_and_b32 s%d, s%d, 7" % (sTMP2, sTMP2))
                e.raw("s_lshl_b32 s%d, s%d, 1" % (sTMP2, sTMP2))
                e.raw("s_and_b32 s%d, s%d, 1" % (sTMP, sCNT))
                e.raw("s_add_u32 s%d, s%d, s%d" % (sTMP2, sTMP2, sTMP))
                e.raw("s_lshl_b32 s%d, s%d, 16" % (sTMP2, sTMP2))
                dq += wo_ops(sM0WW, 0, sTMP2, 0, 8, ("W", t // 4))
            else:
                dq += wo_ops(sM0WW, 0, sHO + 3, 64, 8, ("W", 7))
        kq = []
        if do_k:
            kq += kv_ops("K", t4 % 4, sKOFF, t + 4, post="s_add_u32 s%d, s%d, 0x4000" % (sKOFF, sKOFF))
        if do_v:
            kq += kv_ops("V", (t4 + 3) % 4, sVOFF, t + 3, post="s_add_u32 s%d, s%d, 0x4000" % (sVOFF, sVOFF))
        if o.wlast:
            dq = kq + dq
        else:
            dq = dq + kq
        if mode == "tail":
            qs = {28: [0], 29: [1, 2], 30: [3, 4], 31: [5, 6, 7]}[t]
            for q in qs:
                dq += quarter_ops(q, 4, "Q45")
            if t == 30:
                e.vmtag = "cnt"
                e.valu("v_mov_b32", V(vCK), 0)
                e.buf_load("buffer_load_dword", V(vCK), V(vCK), srdDBG, 0, 0, "sc1")

        def dma_next():
            if dq:
                dq.pop(0)()
        mq0 = max_ops(nxt, 0) if do_qk else []
        mq1 = max_ops(nxt, 1) if do_qk else []
        ms0, ms1 = {"i": 0}, {"i": 0}
        if do_qk:
            run_budget(8, vq, state)
            for g in range(16):
                qk_mfma(nxt, g, V(vC, 16))
                if g + NKF < 16:
                    kread(kslot, g + NKF)
                if 6 <= g < 6 + NVF:
                    vread(vslot, g - 6)
                if g % o.dstep == 0:
                    dma_next()
                run_budget(4, vq, state)
                if g >= 11:
                    run_budget(2, mq0, ms0)
        else:
            for j in range(NVF):
                vread(vslot, j)
        for j in range(16):
            ks = j // 4
            run_upto(marks[ks])
            pv_mfma(cur, j)
            if j + NVF < 16:
                vread(vslot, j + NVF)
            if j % o.dstep == 0 or not do_qk:
                dma_next()
            run_budget(4, vq, state)
            if do_qk:
                run_budget(99, mq0, ms0)
                if j >= 10:
                    run_budget(2, mq1, ms1)
        assert state["i"] == len(vq)
        assert not dq
        if do_qk:
            run_budget(99, mq1, ms1)
            e.ins("v_cmp_lt_f32 vcc, 0x%x, %s" % (f32bits(THRESH), vM[0]), "valu", dst=["vcc"], src=vM[1])
            lbl, ret = "L_rare_%s" % uid, "L_ret_%s" % uid
            e.raw("s_cbranch_vccnz %s" % lbl)
            e.label(ret)
            rare.append((lbl, ret, nxt))
        assert not e.ldsq

    e.wait_vm(("K", 0))
    e.barrier()
    for i in range(NKF):
        kread(0, i)
    zi = 0
    for g in range(16):
        qk_mfma(vS, g, 0)
        if g + NKF < 16:
            kread(0, g + NKF)
        for _ in range(4):
            e.valu("v_mov_b32", V(vO + zi), 0)
            zi += 1
    e.valu("v_mov_b32", V(vL0), 0)
    e.valu("v_mov_b32", V(vL1), 0)
    for c, fn in max_ops(vS, 0) + max_ops(vS, 1):
        fn()
    full_max()
    for i in range(32):
        e.valu("v_sub_f32", V(vS + i), V(vS + i), vM)
    for i in range(16):
        e.valu("v_sub_f32", V(vC + i), 0, vM)

    raw("s_mov_b32 s%d, 0" % sCNT)
    stamp(3)
    if o.stamp:
        raw("s_memtime s[60:61]")
        raw("s_waitcnt lgkmcnt(0)")
        raw("v_writelane_b32 v31, s60, 6")
        raw("s_mov_b32 s59, 7")

    def body(p):
        G.e.label("L_loop")
        for t4 in range(4):
            tile(4 * p + t4, "loop", "m%d" % t4)
        G.e.raw("s_add_u32 s%d, s%d, 1" % (sCNT, sCNT))
        G.e.raw("s_cmp_lt_u32 s%d, 7" % sCNT)
        G.e.raw("s_cbranch_scc1 L_loop")

    real = G.e
    sim = copy.deepcopy(real)
    G.e = sim
    logs = []
    backs = []
    for p in range(7):
        sim.vm_log = []
        body(p)
        logs.append(list(sim.vm_log))
        backs.append(sim.snapshot())
    over = [min(l[i] for l in logs) for i in range(len(logs[0]))]
    sys.stderr.write("loop vmcnt sites: %s\n" % logs)
    G.e = real
    e = real
    rare.clear()
    e.merge(backs[0])
    e.merge(backs[-1])
    e.vm_log = []
    e.vm_over = over
    body(0)
    e.vm_over = None
    e.vmq = list(sim.vmq)
    for t in range(28, 32):
        tile(t, "tail", "t%d" % t)
    stamp(4)
    if o.stamp:
        raw("s_memtime s[60:61]")
        raw("s_waitcnt lgkmcnt(0)")
        raw("v_writelane_b32 v31, s60, 7")

    l = V(vL0)
    t = V(vT + 1)
    e.valu("v_add_f32", l, l, V(vL1))
    e.valu("v_mov_b32", t, l)
    e.ins("v_permlane32_swap_b32 %s, %s" % (l[0], t[0]), "perm", dst=l[1] + t[1], src=l[1] + t[1])
    e.valu("v_add_f32", l, l, t)
    e.trans("v_rcp_f32", l, l)
    vo2 = V(vT + 2)
    e.valu("v_add_u32", vo2, 4096, V(vLN))
    e.vmtag = "Ost"
    for sg in range(8):
        base = vO + 8 * sg
        for k in range(8):
            e.valu("v_mul_f32", V(base + k), V(base + k), l)
        fr = vQ + 4 * sg
        for k in range(4):
            e.valu("v_cvt_pk_bf16_f32", V(fr + k), V(base + 2 * k), V(base + 2 * k + 1))
        e.buf_store("buffer_store_dwordx4", V(fr, 4), V(vLN) if sg < 4 else vo2, srdWS, 0, (sg & 3) * 1024, "sc1")
    vQA = 1
    raw("s_sub_u32 s%d, s%d, s%d" % (sTMP, sM0W, sM0WW))
    raw("s_add_u32 s%d, s%d, 0x%x" % (sTMP2, sTMP, LDS_V))
    for nb in range(2):
        e.valu("v_add_u32", V(vQA + nb), S(sTMP), V(vRA + nb))
        e.valu("v_add_u32", V(vQA + 2 + nb), S(sTMP2), V(vRA + nb))
    def quarter_reads(q, dstfn):
        for s2 in range(2):
            for nb in range(2):
                for u in range(2):
                    sg = 2 * (q & 3) + s2
                    off = (16 * s2 + 8 * u) * 128
                    if QREG[q] is None:
                        addr = V(vRA + nb)
                    elif QREG[q] < LDS_V:
                        addr, off = V(vQA + nb), off + QREG[q]
                    else:
                        addr, off = V(vQA + 2 + nb), off + QREG[q] - LDS_V
                    e.ds_read("ds_read_b64_tr_b16", dstfn(q >> 2, sg, nb, u), addr, off)

    vW45 = 128
    vAcc = vQ
    vOB = vO

    def need_flag(j, sfx=""):
        raw("s_bitcmp1_b32 s%d, %d" % (sMASK, j))
        raw("s_cbranch_scc1 L_ok_%d" % j)
        e.label("L_spin_%d" % j)
        raw("buffer_load_dword %s, %s, s[%d:%d], 0 offen sc1" % (vF[0], vFA[0], sFL, sFL + 3))
        raw("s_waitcnt vmcnt(0)")
        raw("v_cmp_ne_u32 vcc, 0, %s" % vF[0])
        raw("s_nop 1")
        raw("s_mov_b32 s%d, vcc_lo" % sMASK)
        raw("s_bitcmp1_b32 s%d, %d" % (sMASK, j))
        raw("s_cbranch_scc1 L_ok_%d" % j)
        raw("s_sleep 1")
        raw("s_sub_u32 s%d, s%d, 1" % (sTO, sTO))
        raw("s_cmp_lg_u32 s%d, 0" % sTO)
        raw("s_cbranch_scc1 L_spin_%d" % j)
        raw("s_branch L_done")
        e.label("L_ok_%d" % j)

    def o_loads(j, check=True):
        if check:
            need_flag(j)
        e.vmtag = ("O", j)
        raw("s_lshr_b32 s%d, s%d, 4" % (sR7, sHO + j))
        raw("s_add_u32 s%d, s%d, 0x1000" % (sR19, sR7))
        for sg in range(8):
            e.buf_load("buffer_load_dwordx4", V(vOB + 32 * (j & 1) + 4 * sg, 4), V(vLN), srdOI,
                       S(sR7 if sg < 4 else sR19), (sg & 3) * 1024, "sc1")

    def q45_reads():
        for q in range(8):
            quarter_reads(q, lambda hh, sg, nb, u: V(vW45 + 64 * hh + 8 * sg + 4 * nb + 2 * u, 2))

    def flag_store():
        e.wait_vm("Ost")
        e.valu("v_mov_b32", V(vT), 1)
        raw("s_mov_b64 exec, 1")
        e.vmtag = "flag"
        e.buf_store("buffer_store_dword", V(vT), V(vFZ2), srdFL, 0, 0, "sc1")
        raw("s_mov_b64 exec, -1")

    def wfrag(j, sg, nb):
        if j < 4:
            return A(64 * j + 8 * sg + 4 * nb, 4)
        if j < 6:
            return V(vW45 + 64 * (j - 4) + 8 * sg + 4 * nb, 4)
        return A(64 * (j - 6) + 8 * sg + 4 * nb, 4)

    e.wait_vm("Q45", "poll")
    raw("v_cmp_ne_u32 vcc, 0, %s" % vF[0])
    raw("s_nop 1")
    raw("s_mov_b32 s%d, vcc_lo" % sMASK)
    raw("s_and_b32 s%d, s%d, 3" % (sTMP, sMASK))
    raw("s_cmp_eq_u32 s%d, 3" % sTMP)
    raw("s_cbranch_scc0 L_slow")
    fork = copy.deepcopy(e)
    o_loads(0, False)
    o_loads(1, False)
    q45_reads()
    flag_store()
    e.lgkm0()
    raw("s_branch L_join")
    fast_lines = e.lines
    fork.lines = fast_lines
    G.e = e = fork
    e.label("L_slow")
    q45_reads()
    flag_store()
    e.lgkm0()
    o_loads(0)
    o_loads(1)
    e.label("L_join")
    e.nop(2)
    stamp(50)
    dq = []
    for q in range(8):
        dq += quarter_ops(q, 6, "Q67")
    for j in range(8):
        e.wait_vm(("O", j))
        if j == 0:
            stamp(51)
        for sg in range(8):
            for nb in range(2):
                d = V(vAcc + 16 * nb, 16)
                e.mfma(d, wfrag(j, sg, nb), V(vOB + 32 * (j & 1) + 4 * sg, 4), 0 if (j == 0 and sg == 0) else d)
                if dq and (nb == 0 or j > 0):
                    dq.pop(0)()
        if j + 2 < 8:
            o_loads(j + 2)
        if j == 3:
            assert not dq
            e.wait_vm("Q67")
            for q in range(8):
                quarter_reads(q, lambda hh, sg, nb, u: A(64 * hh + 8 * sg + 4 * nb + 2 * u, 2))
    stamp(52)
    wa = V(7)
    e.valu("v_add_u32", wa, S(sM0WW), V(vLN))
    for q in range(8):
        e.ds_write("ds_write_b128", wa, V(vAcc + 4 * q, 4), q * 1024)
    e.lgkm0()
    e.barrier()
    raw("s_lshl_b32 s%d, s%d, 11" % (sTMP, sW))
    raw("s_add_u32 s%d, s%d, 0x%x" % (sTMP, sTMP, LDS_W))
    ra = V(8)
    e.valu("v_add_u32", ra, S(sTMP), V(vLN))
    for k in range(2):
        for ww in range(4):
            e.ds_read("ds_read_b128", V(64 + 16 * k + 4 * ww, 4), ra, ww * 8192 + k * 1024)
    oa = V(9)
    e.valu("v_bfe_u32", oa, V(vLN), 4, 5)
    e.valu("v_lshlrev_b32", oa, 10, oa)
    e.valu("v_lshrrev_b32", V(10), 9, V(vLN))
    e.valu("v_lshl_add_u32", oa, V(10), 3, oa)
    raw("s_lshl_b32 s%d, s%d, 5" % (sTMP, sW))
    e.valu("v_add_u32", oa, S(sTMP), oa)
    for k in range(2):
        b = 64 + 16 * k
        for c in range(4):
            e.valu("v_add_f32", V(b + c), V(b + c), V(b + 4 + c))
            e.valu("v_add_f32", V(b + 8 + c), V(b + 8 + c), V(b + 12 + c))
            e.valu("v_add_f32", V(b + c), V(b + c), V(b + 8 + c))
        e.valu("v_cvt_pk_bf16_f32", V(12 + 2 * k), V(b), V(b + 1))
        e.valu("v_cvt_pk_bf16_f32", V(13 + 2 * k), V(b + 2), V(b + 3))
        e.buf_store("buffer_store_dwordx2", V(12 + 2 * k, 2), oa, srdOUT, 0, 16 * k)
    if o.stamp:
        e.vmcnt(0)
        stamp(5)
        raw("s_lshl_b32 s47, s2, 2")
        raw("s_add_u32 s47, s47, s%d" % sW)
        raw("s_lshl_b32 s47, s47, 8")
        raw("s_add_u32 s47, s47, 0x%x" % STAMP_OFF)
        raw("s_add_u32 s92, s18, s47")
        raw("s_addc_u32 s93, s19, 0")
        raw("s_mov_b32 s94, 256")
        raw("s_mov_b32 s95, 0x20000")
        e.valu("v_lshrrev_b32", V(30), 2, V(vLN))
        e.buf_store("buffer_store_dword", V(31), V(30), S(92, 4), 0, 0)
    e.label("L_done")
    raw("s_endpgm")
    for lbl, ret, sb in rare:
        gen_rare(lbl, ret, sb)
    for k in range(7):
        e.label("L_wrd_%d" % k)
        wo_step_reads(k)
        e.ldsq = []
        raw("s_branch L_wrd_ret")
    return e


def build(o):
    a = gen(o)
    out = HEADER
    out += "; @launch grid=(256,1,1) block=(256,1,1) lds=163840\n"
    out += '.amdgcn_target "amdgcn-amd-amdhsa--gfx950"\n.text\n'
    out += ".globl %s\n.p2align 8\n.type %s,@function\n%s:\n" % (NAME, NAME, NAME)
    out += a.text()
    out += '.section .rodata,"a"\n'
    out += """.p2align 6
.amdhsa_kernel %s
  .amdhsa_next_free_vgpr 512
  .amdhsa_next_free_sgpr 100
  .amdhsa_accum_offset 256
  .amdhsa_group_segment_fixed_size 0
  .amdhsa_kernarg_size 64
  .amdhsa_user_sgpr_count 2
  .amdhsa_user_sgpr_kernarg_segment_ptr 1
  .amdhsa_system_sgpr_workgroup_id_x 1
.end_amdhsa_kernel
""" % NAME
    sys.stderr.write("%s nops=%d\n" % (a.count, a.nops))
    return out


if __name__ == "__main__":
    o = Opt()
    for arg in sys.argv[2:]:
        k, v = arg.split("=")
        setattr(o, k, v if k in ("kf", "vf", "wof") else int(v))
    open(sys.argv[1], "w").write(build(o))
```

```python
import sys
import struct
import math
import copy
from emit import Emit, V, A, S

NAME = "standalone__mha_block_cached__near_ridge_kernel"

HEADER = """; Kernarg layout for this problem (64 bytes, ptrs only, base s[0:1]):
"""


def f32bits(x):
    return struct.unpack("<I", struct.pack("<f", x))[0]


SCALE = (128 ** -0.5) * math.log2(math.e)
THRESH = 8.0

vKA = 1
vVA = 9
vKD = 13
vVD = 17
vL0, vL1 = 18, 19
vT = 20
vWD = 23
vRA = 24
vCK = 26
vLN = 27
vQ = 32
vO = 64
vS = 128
vC = 192
vKF = 208
vVF = 232
NKF = 6
NVF = 6

sK, sV, sX, sWQ, sWS, sWO, sOI, sOUT, sFL, sDBG = 20, 24, 28, 32, 36, 64, 68, 72, 76, 80
sB, sH, sW, sCNT, sKOFF, sVOFF, sM0W, sTMP, sTMP2 = 40, 41, 42, 43, 44, 45, 46, 47, 48
sRHO, sR19, sR7, sPQ, sNT, sROT, sMASK, sTO, sM0WW = 49, 50, 51, 52, 53, 54, 55, 56, 57
sHO = 84
sXCC, sTRY = 58, 96

LDS_K = 0
LDS_V = 65536
LDS_W = 131072
FLAG_OFF = 0x1000000
STAMP_OFF = 0x4000000


class Opt:
    kf = "nt"
    vf = ""
    stamp = 0
    notile = 0
    wof = ""
    dstep = 2
    wlast = 0


class G:
    e = None


def gen(o):
    G.e = Emit()
    e = G.e
    kflag = o.kf.replace("+", " ")
    vflag = o.vf.replace("+", " ")
    woflag = o.wof.replace("+", " ")

    def raw(t):
        G.e.raw(t)

    def stamp(idx):
        if not o.stamp:
            return
        e = G.e
        assert not e.ldsq
        e.raw("s_memrealtime s[60:61]")
        e.raw("s_waitcnt lgkmcnt(0)")
        if isinstance(idx, int):
            e.raw("v_writelane_b32 v31, s60, %d" % idx)
        else:
            e.raw("s_mov_b32 m0, %s" % idx[0])
            e.raw("s_nop 4")
            e.raw("v_writelane_b32 v31, s60, m0")

    raw("s_cmp_ge_u32 s2, 256")
    raw("s_cbranch_scc1 L_done")
    raw("s_load_dwordx16 s[4:19], s[0:1], 0")
    if o.stamp:
        raw("s_memrealtime s[62:63]")
    e.valu("v_lshrrev_b32", V(vT), 6, V(0))
    e.ins("v_readfirstlane_b32 s%d, v%d" % (sW, vT), "rfl", dst=["s%d" % sW], src=["v%d" % vT])
    raw("s_and_b32 s%d, s2, 1" % sB)
    raw("s_lshl_b32 s%d, s%d, 2" % (sB, sB))
    raw("s_bfe_u32 s%d, s2, 0x20003" % sTMP)
    raw("s_add_u32 s%d, s%d, s%d" % (sB, sB, sTMP))
    raw("s_bfe_u32 s%d, s2, 0x20001" % sH)
    raw("s_lshl_b32 s%d, s%d, 3" % (sH, sH))
    raw("s_lshr_b32 s%d, s2, 5" % sTMP)
    raw("s_add_u32 s%d, s%d, s%d" % (sH, sH, sTMP))
    raw("s_lshl_b32 s%d, s%d, 1" % (sRHO, sB))
    raw("s_add_u32 s%d, s%d, s%d" % (sRHO, sRHO, sH))
    tb = vKF
    lane = V(tb)
    t_i4, t_i15, t_hf, t_k31, t_a, t_b, t_r, t_cc, t_ds, t_w16, t_i3, t_p7 = (V(tb + 1 + i) for i in range(12))
    e.valu("v_and_b32", lane, 63, V(0))
    e.valu("v_lshrrev_b32", t_i4, 4, lane)
    e.valu("v_and_b32", t_i15, 15, lane)
    e.valu("v_lshrrev_b32", t_hf, 5, lane)
    e.valu("v_and_b32", t_k31, 31, lane)
    e.valu("v_lshrrev_b32", t_r, 2, t_i15)
    e.valu("v_and_b32", t_cc, 3, lane)
    e.valu("v_and_b32", t_ds, 1, t_i4)
    e.valu("v_lshrrev_b32", t_i3, 3, lane)
    e.valu("v_and_b32", t_p7, 7, lane)
    e.valu("v_lshlrev_b32", V(vLN), 4, lane)
    raw("s_lshl_b32 s%d, s%d, 4" % (sTMP, sW))
    e.valu("v_add_u32", t_w16, S(sTMP), t_i4)
    raw("s_lshl_b32 s%d, s%d, 12" % (sM0W, sW))
    raw("s_lshl_b32 s%d, s%d, 13" % (sM0WW, sW))
    raw("s_add_u32 s%d, s%d, 0x%x" % (sM0WW, sM0WW, LDS_W))
    vWQA = vC
    vWW = vC + 4
    vWQL = vC + 5
    vXL = vC + 6
    vXW = vC + 7
    vXR = vC + 9
    vFZ = vC + 13
    e.valu("v_lshlrev_b32", t_a, 2, t_i4)
    e.valu("v_xor_b32", t_a, t_a, t_i15)
    e.valu("v_lshlrev_b32", t_a, 4, t_a)
    e.valu("v_lshl_add_u32", V(vWQL), t_w16, 13, t_a)
    e.valu("v_lshl_add_u32", V(vVD), t_w16, 8, t_a)
    raw("s_lshl_b32 s%d, s%d, 5" % (sTMP, sW))
    e.valu("v_add_u32", t_b, S(sTMP), t_i3)
    for par in range(2):
        e.valu("v_lshrrev_b32", t_a, 1, t_i3)
        e.valu("v_add_u32", t_a, 4 * par, t_a)
        e.valu("v_xor_b32", t_a, t_a, t_p7)
        e.valu("v_lshlrev_b32", t_a, 4, t_a)
        e.valu("v_lshl_add_u32", V(vXW + par), t_b, 10, t_a)
    raw("s_waitcnt lgkmcnt(0)")
    raw("s_lshl_b32 s%d, s%d, 17" % (sTMP2, sB))
    raw("s_add_u32 s%d, s4, s%d" % (sX, sTMP2))
    raw("s_addc_u32 s%d, s5, 0" % (sX + 1))
    raw("s_mov_b32 s%d, 0x20000" % (sX + 2))
    raw("s_mov_b32 s%d, 0x20000" % (sX + 3))
    raw("s_lshl_b32 s%d, s%d, 8" % (sTMP2, sH))
    raw("s_add_u32 s%d, s10, s%d" % (sWQ, sTMP2))
    raw("s_addc_u32 s%d, s11, 0" % (sWQ + 1))
    raw("s_sub_u32 s%d, 0x400000, s%d" % (sWQ + 2, sTMP2))
    raw("s_mov_b32 s%d, 0x20000" % (sWQ + 3))
    raw("s_add_u32 s%d, s18, 0x%x" % (sFL, FLAG_OFF))
    raw("s_addc_u32 s%d, s19, 0" % (sFL + 1))
    raw("s_mov_b32 s%d, 0x1000" % (sFL + 2))
    raw("s_mov_b32 s%d, 0x20000" % (sFL + 3))
    srdK, srdV, srdX, srdWQ, srdWS, srdWO, srdOI, srdOUT, srdFL, srdDBG = (
        S(x, 4) for x in (sK, sV, sX, sWQ, sWS, sWO, sOI, sOUT, sFL, sDBG))
    raw("s_mov_b32 s%d, s16" % sDBG)
    raw("s_mov_b32 s%d, s17" % (sDBG + 1))
    raw("s_mov_b32 s%d, 256" % (sDBG + 2))
    raw("s_mov_b32 s%d, 0x20000" % (sDBG + 3))
    vSL, vSA = V(vT + 1), V(vT + 2)
    raw("s_getreg_b32 s%d, hwreg(HW_REG_XCC_ID)" % sXCC)
    raw("s_and_b32 s%d, s%d, 7" % (sXCC, sXCC))
    raw("s_lshl_b32 s%d, s%d, 2" % (sTMP, sXCC))
    raw("s_add_u32 s%d, s%d, 64" % (sTMP, sTMP))
    e.valu("v_mov_b32", vSA, S(sTMP))
    e.valu("v_mov_b32", vSL, 1)
    raw("s_lshl_b32 s%d, s%d, 2" % (sTMP2, sB))
    raw("s_add_u32 s%d, s%d, s%d" % (sTMP2, sTMP2, sW))
    raw("s_lshl_b32 s%d, s%d, 5" % (sTMP2, sTMP2))
    raw("s_add_u32 s%d, s%d, s%d" % (sTMP2, sTMP2, sH))
    raw("s_lshl_b32 s%d, s%d, 2" % (sTMP, sTMP2))
    e.valu("v_mov_b32", V(vFZ), S(sTMP))
    e.valu("v_mov_b32", t_a, 0)
    raw("s_mov_b64 exec, 1")
    e.vmtag = "fz"
    e.buf_store("buffer_store_dword", t_a, V(vFZ), srdFL, 0, 0, "sc1")
    raw("s_mov_b64 exec, -1")
    raw("s_lshl_b32 s%d, s%d, 13" % (sTMP2, sTMP2))
    raw("s_add_u32 s%d, s18, s%d" % (sWS, sTMP2))
    raw("s_addc_u32 s%d, s19, 0" % (sWS + 1))
    raw("s_mov_b32 s%d, 0x2000" % (sWS + 2))
    raw("s_mov_b32 s%d, 0x20000" % (sWS + 3))

    XWB = [(LDS_V + 32768, LDS_V + 49152), (LDS_W + 16384, LDS_W), (LDS_K + 49152, LDS_V + 16384)]

    def xw_ops(tau):
        wq_base, x_base = XWB[tau % 3]
        ops = []

        def op(kind, j):
            def f():
                e.vmtag = ("xw", tau)
                if kind == "w":
                    if j == 0:
                        raw("s_add_u32 s%d, s%d, %d" % (sTMP, sRHO, tau))
                        raw("s_and_b32 s%d, s%d, 7" % (sTMP, sTMP))
                        raw("s_lshl_b32 s%d, s%d, 7" % (sR7, sTMP))
                    e.salu("s_add_u32", "m0", S(sM0W), wq_base + j * 1024)
                    if j:
                        raw("s_add_u32 s%d, s%d, 0x8000" % (sR19, sR19))
                    else:
                        raw("s_lshl_b32 s%d, s%d, 12" % (sR19, sR7))
                    e.buf_dma(V(vWQL), srdWQ, S(sR19), 0)
                else:
                    e.salu("s_add_u32", "m0", S(sM0W), x_base + j * 1024)
                    if j:
                        raw("s_add_u32 s%d, s%d, 0x2000" % (sR7, sR7))
                    e.buf_dma(V(vXW + (j & 1)), srdX, S(sR7), 0)
            return f
        return [op("w", j) for j in range(4)] + [op("x", j) for j in range(4)]

    def xw_dma(tau):
        for f in xw_ops(tau):
            f()

    xw_dma(0)
    xw_dma(1)

    raw("s_lshl_b32 s%d, s%d, 5" % (sTMP, sB))
    raw("s_add_u32 s%d, s%d, s%d" % (sTMP, sTMP, sH))
    raw("s_lshl_b32 s%d, s%d, 19" % (sTMP2, sTMP))
    raw("s_add_u32 s%d, s6, s%d" % (sK, sTMP2))
    raw("s_addc_u32 s%d, s7, 0" % (sK + 1))
    raw("s_mov_b32 s%d, 0x80000" % (sK + 2))
    raw("s_mov_b32 s%d, 0x20000" % (sK + 3))
    raw("s_add_u32 s%d, s8, s%d" % (sV, sTMP2))
    raw("s_addc_u32 s%d, s9, 0" % (sV + 1))
    raw("s_mov_b32 s%d, 0x80000" % (sV + 2))
    raw("s_mov_b32 s%d, 0x20000" % (sV + 3))
    for j in range(4):
        e.valu("v_add_u32", t_a, 4 * j, t_i4)
        e.valu("v_xor_b32", t_a, t_a, t_i15)
        e.valu("v_lshlrev_b32", t_a, 4, t_a)
        e.valu("v_lshl_add_u32", V(vKD + j), t_w16, 8, t_a)

    def kv_ops(kind, slot, soff_reg, t, pre=None, post=None):
        def op(j):
            def f():
                e = G.e
                e.vmtag = (kind, t)
                e.salu("s_add_u32", "m0", S(sM0W), (LDS_K if kind == "K" else LDS_V) + slot * 16384)
                if j == 0 and pre:
                    e.raw(pre)
                if kind == "K":
                    e.buf_dma(V(vKD + j), srdK, S(soff_reg), j * 1024, kflag)
                else:
                    e.buf_dma(V(vVD), srdV, S(soff_reg), j * 1024, vflag)
                if j == 3 and post:
                    e.raw(post)
            return f
        return [op(j) for j in range(4)]

    def kv_init_ops(kind, t):
        reg = sKOFF if kind == "K" else sVOFF
        return kv_ops(kind, t % 4, reg, t, pre="s_mov_b32 s%d, 0x%x" % (reg, t * 16384),
                      post="s_add_u32 s%d, s%d, 0x4000" % (reg, reg))

    def kv_init(kind, t):
        for f in kv_init_ops(kind, t):
            f()

    if o.stamp:
        raw("v_writelane_b32 v31, s62, 0")
    stamp(1)

    for s in range(8):
        e.valu("v_or_b32", t_a, 2 * s, t_hf)
        e.valu("v_xor_b32", t_a, t_a, t_i15)
        e.valu("v_lshlrev_b32", t_a, 4, t_a)
        e.valu("v_lshl_add_u32", V(vKA + s), t_k31, 8, t_a)

    def tr_addr(dst, blk, blkxor, lo_first, hfshift, rowshift, base):
        e.valu("v_xor_b32", t_a, blk, blkxor)
        e.valu("v_lshlrev_b32", t_a, 1, t_a)
        e.valu("v_add_u32", t_a, t_a, t_ds)
        e.valu("v_lshlrev_b32", t_a, 1, t_a)
        if lo_first:
            e.valu("v_lshrrev_b32", t_b, 1, t_cc)
        else:
            e.valu("v_and_b32", t_b, 1, t_cc)
        e.valu("v_add_u32", t_a, t_a, t_b)
        e.valu("v_lshlrev_b32", t_a, 4, t_a)
        if lo_first:
            e.valu("v_and_b32", t_b, 1, t_cc)
        else:
            e.valu("v_lshrrev_b32", t_b, 1, t_cc)
        e.valu("v_lshl_add_u32", t_a, t_b, 3, t_a)
        e.valu("v_lshl_add_u32", t_b, t_hf, hfshift, t_r)
        e.valu("v_lshl_add_u32", t_a, t_b, rowshift, t_a)
        e.valu("v_add_u32", dst, base, t_a)

    for db in range(4):
        tr_addr(V(vVA + db), db, t_r, True, 2, 8, LDS_V)
        tr_addr(V(vWQA + db), db, t_r, False, 3, 8, LDS_K + 49152)
    t_rh = V(tb + 13)
    e.valu("v_lshrrev_b32", t_rh, 1, t_r)
    for nb in range(2):
        tr_addr(V(vRA + nb), nb, t_rh, True, 2, 7, S(sM0WW))
    e.valu("v_bfe_u32", t_a, t_i3, 1, 1)
    e.valu("v_lshlrev_b32", t_a, 2, t_a)
    e.valu("v_xor_b32", t_a, t_a, t_p7)
    e.valu("v_lshlrev_b32", t_a, 4, t_a)
    e.valu("v_lshl_add_u32", V(vWD), t_i3, 10, t_a)
    raw("s_add_u32 s%d, s%d, 0x%x" % (sTMP, sM0W, LDS_V + 16384))
    for ee in range(4):
        e.valu("v_bfe_u32", t_b, t_k31, 1, 3)
        e.valu("v_or_b32", t_a, 2 * ee, t_hf)
        e.valu("v_xor_b32", t_a, t_a, t_b)
        e.valu("v_lshlrev_b32", t_a, 4, t_a)
        e.valu("v_lshl_add_u32", t_a, t_k31, 7, t_a)
        e.valu("v_add_u32", V(vXR + ee), S(sTMP), t_a)
    NQ = 12
    vQF = vS
    vXF = vKF + 16
    vWQB = vS + 48
    for db in range(4):
        e.valu("v_add_u32", V(vWQB + db), LDS_W + 16384 - (LDS_K + 49152), V(vWQA + db))

    def xread(tau):
        off = XWB[tau % 3][1] - (LDS_V + 16384)
        for ee in range(4):
            e.ds_read("ds_read_b128", V(vXF + 16 * (tau & 1) + 4 * ee, 4), V(vXR + ee), off)

    def qrd(tau, i):
        ee, db = divmod(i, 4)
        fr = vQF + 4 * ((16 * tau + i) % NQ)
        base = XWB[tau % 3][0]
        if base == LDS_W + 16384:
            addr, off = V(vWQB + db), 0
        else:
            addr, off = V(vWQA + db), base - (LDS_K + 49152)
        for u in range(2):
            e.ds_read("ds_read_b64_tr_b16", V(fr + 2 * u, 2), addr, off + (16 * ee + 4 * u) * 256)

    def qmf(tau, i):
        ee, db = divmod(i, 4)
        fr = vQF + 4 * ((16 * tau + i) % NQ)
        first = (tau == 0 and ee == 0)
        e.mfma(V(vO + 16 * db, 16), V(fr, 4), V(vXF + 16 * (tau & 1) + 4 * ee, 4),
               0 if first else V(vO + 16 * db, 16))

    e.wait_vm(("xw", 0))
    e.barrier()
    stamp(46)
    xread(0)
    for i in range(8):
        qrd(0, i)
    KVS = {2: [("K", 0)], 5: [("K", 1)], 6: [("V", 0), ("K", 2)], 7: [("V", 1), ("K", 3)]}
    for tau in range(8):
        dq = xw_ops(tau + 2) if tau + 2 < 8 else []
        for kind, t in KVS.get(tau, []):
            dq += kv_init_ops(kind, t)
        pos = [int((k + 0.5) * 12 / max(len(dq), 1)) for k in range(len(dq))]
        for i in range(12):
            qmf(tau, i)
            if i < 8:
                qrd(tau, i + 8)
            while dq and pos[0] <= i:
                pos.pop(0)
                dq.pop(0)()
        assert not dq
        if tau == 5:
            raw("s_cmp_lg_u32 s%d, 0" % sW)
            raw("s_cbranch_scc1 L_noclaim")
            raw("v_mov_b32 v%d, 0" % vT)
            raw("s_mov_b64 exec, 1")
            raw("buffer_atomic_add %s, v%d, s[%d:%d], 0 offen sc1" % (vSL[0], vT, sDBG, sDBG + 3))
            raw("buffer_atomic_add %s, %s, s[%d:%d], 0 offen sc0 sc1" % (vSL[0], vSA[0], sDBG, sDBG + 3))
            raw("s_mov_b64 exec, -1")
            e.label("L_noclaim")
            claim_mark = e.vm_total
        if tau < 7:
            e.wait_vm(("xw", tau + 1))
            e.lgkm0()
            e.barrier()
            if o.stamp > 1:
                stamp(53 + tau)
            xread(tau + 1)
            for i in range(8):
                qrd(tau + 1, i)
        for i in range(12, 16):
            qmf(tau, i)
    stamp(2)
    v2ops = kv_init_ops("V", 2)
    raw("s_mov_b32 s%d, 0x%x" % (sTMP, f32bits(SCALE)))
    for db in range(4):
        for r in range(0, 16, 2):
            a, b = V(vO + 16 * db + r), V(vO + 16 * db + r + 1)
            e.valu("v_mul_f32", a, S(sTMP), a)
            e.valu("v_mul_f32", b, S(sTMP), b)
            e.valu("v_cvt_pk_bf16_f32", V(vQ + 8 * db + r // 2), a, b)
        v2ops[db]()
    raw("s_cmp_lg_u32 s%d, 0" % sW)
    raw("s_cbranch_scc1 L_nocount")
    raw("s_mov_b32 s%d, 0" % sTRY)
    raw("s_waitcnt vmcnt(%d)" % (e.vm_total - claim_mark))
    e.label("L_claim")
    e.ins("v_readfirstlane_b32 s%d, %s" % (sTMP, vSL[0]), "rfl", dst=["s%d" % sTMP], src=vSL[1])
    raw("s_cmp_lt_u32 s%d, 32" % sTMP)
    raw("s_cbranch_scc1 L_claimed")
    raw("s_add_u32 s%d, s%d, 1" % (sTRY, sTRY))
    raw("s_cmp_lt_u32 s%d, 8" % sTRY)
    raw("s_cbranch_scc1 L_retry")
    raw("s_and_b32 s%d, s2, 7" % sXCC)
    raw("s_lshr_b32 s%d, s2, 3" % sTMP)
    raw("s_branch L_claimed")
    e.label("L_retry")
    raw("s_add_u32 s%d, s%d, 1" % (sXCC, sXCC))
    raw("s_and_b32 s%d, s%d, 7" % (sXCC, sXCC))
    raw("s_lshl_b32 s%d, s%d, 2" % (sTMP, sXCC))
    raw("s_add_u32 s%d, s%d, 64" % (sTMP, sTMP))
    raw("v_mov_b32 %s, s%d" % (vSA[0], sTMP))
    raw("v_mov_b32 %s, 1" % vSL[0])
    raw("s_mov_b64 exec, 1")
    raw("buffer_atomic_add %s, %s, s[%d:%d], 0 offen sc0 sc1" % (vSL[0], vSA[0], sDBG, sDBG + 3))
    raw("s_mov_b64 exec, -1")
    raw("s_waitcnt vmcnt(0)")
    raw("s_branch L_claim")
    e.label("L_claimed")
    raw("s_lshl_b32 s%d, s%d, 5" % (sXCC, sXCC))
    raw("s_add_u32 s%d, s%d, s%d" % (sTMP, sTMP, sXCC))
    raw("v_mov_b32 %s, s%d" % (vSL[0], sTMP))
    raw("v_mov_b32 %s, 0x%x" % (vSA[0], LDS_V + 49152))
    raw("ds_write_b32 %s, %s" % (vSA[0], vSL[0]))
    raw("s_waitcnt lgkmcnt(0)")
    e.label("L_nocount")
    vFZ2 = 28
    e.valu("v_mov_b32", V(vFZ2), V(vFZ))

    vFA, vF = V(29), V(30)
    def kread(slot, i):
        kb, s = divmod(i, 8)
        G.e.ds_read("ds_read_b128", V(vKF + 4 * (i % NKF), 4), V(vKA + s), LDS_K + slot * 16384 + kb * 8192)

    def vread(slot, j):
        ks, db = divmod(j, 4)
        fr = vVF + 4 * (j % NVF)
        for u in range(2):
            G.e.ds_read("ds_read_b64_tr_b16", V(fr + 2 * u, 2), V(vVA + db), slot * 16384 + (16 * ks + 8 * u) * 256)

    def qk_mfma(sb, i, cinit):
        kb, s = divmod(i, 8)
        d = V(sb + 16 * kb, 16)
        c = d if s > 0 else cinit
        G.e.mfma(d, V(vKF + 4 * (i % NKF), 4), V(vQ + 4 * s, 4), c)

    def pv_mfma(sb, j):
        ks, db = divmod(j, 4)
        p = V(sb + 8 * ks, 4)
        d = V(vO + 16 * db, 16)
        G.e.mfma(d, V(vVF + 4 * (j % NVF), 4), p, d)

    def softmax_ops(sb, ks):
        b = sb + 8 * ks
        ex = lambda i: (2, lambda: G.e.trans("v_exp_f32", V(b + i), V(b + i)))
        ad = lambda i: (1, lambda: G.e.valu("v_add_f32", V(vL0 + (i & 1)), V(vL0 + (i & 1)), V(b + i)))
        cv = lambda k: (1, lambda: G.e.valu("v_cvt_pk_bf16_f32", V(b + k), V(b + 2 * k), V(b + 2 * k + 1)))
        return [ex(0), ex(1), ex(2), ex(3), ad(0), ad(1), ex(4), ad(2), ex(5), ad(3), cv(0), ex(6), ad(4),
                ex(7), ad(5), cv(1), ad(6), ad(7), cv(2), cv(3)]

    vM = V(vT)

    def max_ops(sb, half):
        ops = []
        b = sb + 16 * half
        if half == 0:
            ops.append((1, lambda: G.e.valu("v_max3_f32", vM, V(b), V(b + 1), V(b + 2))))
            for k in range(3, 15, 2):
                ops.append((1, lambda k=k: G.e.valu("v_max3_f32", vM, vM, V(b + k), V(b + k + 1))))
            ops.append((1, lambda: G.e.valu("v_max_f32", vM, vM, V(b + 15))))
        else:
            for k in range(0, 16, 2):
                ops.append((1, lambda k=k: G.e.valu("v_max3_f32", vM, vM, V(b + k), V(b + k + 1))))
        return ops

    def full_max():
        e = G.e
        t = V(vT + 1)
        e.valu("v_mov_b32", t, vM)
        e.ins("v_permlane32_swap_b32 %s, %s" % (vM[0], t[0]), "perm", dst=vM[1] + t[1], src=vM[1] + t[1])
        e.valu("v_max_f32", vM, vM, t)

    rare = []

    def gen_rare(lbl, ret, sb):
        e = G.e
        e.label(lbl)
        e.nop(16)
        full_max()
        e.valu("v_max_f32", vM, 0, vM)
        f = V(vT + 2)
        e.ins("v_exp_f32 %s, -%s" % (f[0], vM[0]), "trans", dst=f[1], src=vM[1])
        for i in range(32):
            e.valu("v_sub_f32", V(sb + i), V(sb + i), vM)
        for i in range(16):
            e.valu("v_sub_f32", V(vC + i), V(vC + i), vM)
        for i in range(64):
            e.valu("v_mul_f32", V(vO + i), V(vO + i), f)
        e.valu("v_mul_f32", V(vL0), V(vL0), f)
        e.valu("v_mul_f32", V(vL1), V(vL1), f)
        e.nop(4)
        e.raw("s_branch %s" % ret)

    def wo_ops(m0base_sgpr, m0_imm, soff_sgpr, row0, n, tag):
        def op(i):
            def f():
                e = G.e
                e.vmtag = tag
                e.salu("s_add_u32", "m0", S(m0base_sgpr), m0_imm + i * 1024)
                e.raw("s_add_u32 s%d, s%d, 0x%x" % (sTMP, soff_sgpr, (row0 + 8 * i) * 1024))
                e.buf_dma(V(vWD), srdWO, S(sTMP), 0, woflag)
            return f
        return [op(i) for i in range(n)]

    def wo_step_reads(step):
        e = G.e
        j, half = step >> 1, step & 1
        for sg in range(4):
            for nb in range(2):
                for u in range(2):
                    e.ds_read("ds_read_b64_tr_b16", A(64 * j + 8 * (4 * half + sg) + 4 * nb + 2 * u, 2),
                              V(vRA + nb), (16 * sg + 8 * u) * 128)

    QREG = [LDS_K + 0, LDS_K + 16384, LDS_V + 0, LDS_K + 32768, LDS_V + 16384, LDS_K + 49152, LDS_V + 32768, None]

    def quarter_ops(q, jbase, tag):
        j = jbase + (q >> 2)
        if QREG[q] is None:
            return wo_ops(sM0WW, 0, sHO + j, 32 * (q & 3), 4, tag)
        return wo_ops(sM0W, QREG[q], sHO + j, 32 * (q & 3), 4, tag)

    def quarter_dma(q, jbase, tag):
        for f in quarter_ops(q, jbase, tag):
            f()

    def tile(t, mode, uid):
        e = G.e
        t4 = t % 4
        do_k = t + 4 <= 31
        do_v = t + 3 <= 31
        do_qk = t + 1 <= 31
        cur = vS + 32 * (t4 & 1)
        nxt = vS + 32 * ((t4 + 1) & 1)
        kslot = (t4 + 1) % 4
        vslot = t4 % 4
        vq = []
        marks = {}
        for ks in range(4):
            vq += softmax_ops(cur, ks)
            marks[ks] = len(vq)
        state = {"i": 0}

        def run_upto(n):
            while state["i"] < n:
                vq[state["i"]][1]()
                state["i"] += 1

        def run_budget(budget, lst, st):
            while st["i"] < len(lst) and budget > 0:
                c, fn = lst[st["i"]]
                fn()
                st["i"] += 1
                budget -= c

        if t == 31:
            run_upto(len(vq))
        if o.stamp:
            e.raw("s_add_u32 s59, s59, 1")
        tags = [("K", t + 1), ("V", t)]
        if t4 == 3:
            tags.append(("W", t // 4))
        if t == 31:
            tags.append("cnt")
        e.wait_vm(*tags)
        e.barrier()
        if not o.notile:
            stamp(S(59))
        if t4 == 3:
            if mode == "loop":
                for k in range(7):
                    e.raw("s_cmp_eq_u32 s%d, %d" % (sCNT, k))
                    e.raw("s_cbranch_scc1 L_wrd_%d" % k)
                e.label("L_wrd_ret")
            else:
                wo_step_reads(7)
                e.ldsq = []
                e.raw("s_mov_b32 s%d, 0x20000" % sTO)
                e.label("L_cnt")
                e.ins("v_readfirstlane_b32 s%d, v%d" % (sTMP, vCK), "rfl", dst=["s%d" % sTMP], src=["v%d" % vCK])
                e.raw("s_cmp_ge_u32 s%d, 256" % sTMP)
                e.raw("s_cbranch_scc1 L_cnt_ok")
                e.raw("s_sleep 2")
                e.valu("v_mov_b32", V(vCK), 0)
                e.raw("buffer_load_dword v%d, v%d, s[%d:%d], 0 offen sc1" % (vCK, vCK, sDBG, sDBG + 3))
                e.raw("s_waitcnt vmcnt(0)")
                e.raw("s_sub_u32 s%d, s%d, 1" % (sTO, sTO))
                e.raw("s_cmp_lg_u32 s%d, 0" % sTO)
                e.raw("s_cbranch_scc1 L_cnt")
                e.raw("s_branch L_done")
                e.label("L_cnt_ok")
                e.vmtag = "poll"
                e.buf_load("buffer_load_dword", vF, vFA, srdFL, 0, 0, "sc1")
        if do_qk:
            for i in range(NKF):
                kread(kslot, i)
        dq = []
        if t4 == 0:
            if mode == "loop":
                e.raw("s_lshr_b32 s%d, s%d, 1" % (sTMP2, sCNT))
                e.raw("s_add_u32 s%d, s%d, s%d" % (sTMP2, sTMP2, sROT))
                e.raw("s_and_b32 s%d, s%d, 7" % (sTMP2, sTMP2))
                e.raw("s_lshl_b32 s%d, s%d, 1" % (sTMP2, sTMP2))
                e.raw("s_and_b32 s%d, s%d, 1" % (sTMP, sCNT))
                e.raw("s_add_u32 s%d, s%d, s%d" % (sTMP2, sTMP2, sTMP))
                e.raw("s_lshl_b32 s%d, s%d, 16" % (sTMP2, sTMP2))
                dq += wo_ops(sM0WW, 0, sTMP2, 0, 8, ("W", t // 4))
            else:
                dq += wo_ops(sM0WW, 0, sHO + 3, 64, 8, ("W", 7))
        kq = []
        if do_k:
            kq += kv_ops("K", t4 % 4, sKOFF, t + 4, post="s_add_u32 s%d, s%d, 0x4000" % (sKOFF, sKOFF))
        if do_v:
            kq += kv_ops("V", (t4 + 3) % 4, sVOFF, t + 3, post="s_add_u32 s%d, s%d, 0x4000" % (sVOFF, sVOFF))
        if o.wlast:
            dq = kq + dq
        else:
            dq = dq + kq
        if mode == "tail":
            qs = {28: [0], 29: [1, 2], 30: [3, 4], 31: [5, 6, 7]}[t]
            for q in qs:
                dq += quarter_ops(q, 4, "Q45")
            if t == 30:
                e.vmtag = "cnt"
                e.valu("v_mov_b32", V(vCK), 0)
                e.buf_load("buffer_load_dword", V(vCK), V(vCK), srdDBG, 0, 0, "sc1")

        def dma_next():
            if dq:
                dq.pop(0)()
        mq0 = max_ops(nxt, 0) if do_qk else []
        mq1 = max_ops(nxt, 1) if do_qk else []
        ms0, ms1 = {"i": 0}, {"i": 0}
        if do_qk:
            run_budget(8, vq, state)
            for g in range(16):
                qk_mfma(nxt, g, V(vC, 16))
                if g + NKF < 16:
                    kread(kslot, g + NKF)
                if 6 <= g < 6 + NVF:
                    vread(vslot, g - 6)
                if g % o.dstep == 0:
                    dma_next()
                run_budget(4, vq, state)
                if g >= 11:
                    run_budget(2, mq0, ms0)
        else:
            for j in range(NVF):
                vread(vslot, j)
        for j in range(16):
            ks = j // 4
            run_upto(marks[ks])
            pv_mfma(cur, j)
            if j + NVF < 16:
                vread(vslot, j + NVF)
            if j % o.dstep == 0 or not do_qk:
                dma_next()
            run_budget(4, vq, state)
            if do_qk:
                run_budget(99, mq0, ms0)
                if j >= 10:
                    run_budget(2, mq1, ms1)
        assert state["i"] == len(vq)
        assert not dq
        if do_qk:
            run_budget(99, mq1, ms1)
            e.ins("v_cmp_lt_f32 vcc, 0x%x, %s" % (f32bits(THRESH), vM[0]), "valu", dst=["vcc"], src=vM[1])
            lbl, ret = "L_rare_%s" % uid, "L_ret_%s" % uid
            e.raw("s_cbranch_vccnz %s" % lbl)
            e.label(ret)
            rare.append((lbl, ret, nxt))
        assert not e.ldsq

    e.wait_vm(("K", 0))
    e.barrier()
    e.valu("v_mov_b32", V(vCK), LDS_V + 49152)
    e.ds_read("ds_read_b32", V(vCK), V(vCK), 0)
    for i in range(NKF):
        kread(0, i)
    zi = 0
    for g in range(16):
        qk_mfma(vS, g, 0)
        if g + NKF < 16:
            kread(0, g + NKF)
        for _ in range(4):
            e.valu("v_mov_b32", V(vO + zi), 0)
            zi += 1
    e.valu("v_mov_b32", V(vL0), 0)
    e.valu("v_mov_b32", V(vL1), 0)
    e.ins("v_readfirstlane_b32 s%d, v%d" % (sTMP2, vCK), "rfl", dst=["s%d" % sTMP2], src=["v%d" % vCK])
    raw("s_bfe_u32 s%d, s%d, 0x20005" % (sPQ, sTMP2))
    raw("s_lshl_b32 s%d, s%d, 3" % (sPQ, sPQ))
    raw("s_and_b32 s%d, s%d, 7" % (sTMP, sTMP2))
    raw("s_add_u32 s%d, s%d, s%d" % (sPQ, sPQ, sTMP))
    raw("s_bfe_u32 s%d, s%d, 0x10007" % (sNT, sTMP2))
    raw("s_lshl_b32 s%d, s%d, 2" % (sNT, sNT))
    raw("s_bfe_u32 s%d, s%d, 0x20003" % (sTMP, sTMP2))
    raw("s_add_u32 s%d, s%d, s%d" % (sNT, sNT, sTMP))
    raw("s_lshl_b32 s%d, s%d, 1" % (sROT, sTMP))
    for j in range(8):
        raw("s_add_u32 s%d, s%d, %d" % (sTMP, sROT, j))
        raw("s_and_b32 s%d, s%d, 7" % (sTMP, sTMP))
        raw("s_lshl_b32 s%d, s%d, 17" % (sHO + j, sTMP))
    raw("s_lshl_b32 s%d, s%d, 20" % (sTMP, sW))
    raw("s_lshl_b32 s%d, s%d, 7" % (sTMP2, sNT))
    raw("s_add_u32 s%d, s%d, s%d" % (sTMP, sTMP, sTMP2))
    raw("s_add_u32 s%d, s12, s%d" % (sWO, sTMP))
    raw("s_addc_u32 s%d, s13, 0" % (sWO + 1))
    raw("s_sub_u32 s%d, 0x100000, s%d" % (sWO + 2, sTMP2))
    raw("s_mov_b32 s%d, 0x20000" % (sWO + 3))
    raw("s_lshl_b32 s%d, s%d, 15" % (sTMP, sPQ))
    raw("s_add_u32 s%d, s%d, s%d" % (sTMP, sTMP, sTMP2))
    raw("s_add_u32 s%d, s14, s%d" % (sOUT, sTMP))
    raw("s_addc_u32 s%d, s15, 0" % (sOUT + 1))
    raw("s_sub_u32 s%d, 0x8000, s%d" % (sOUT + 2, sTMP2))
    raw("s_mov_b32 s%d, 0x20000" % (sOUT + 3))
    raw("s_lshl_b32 s%d, s%d, 18" % (sTMP, sPQ))
    raw("s_lshl_b32 s%d, s%d, 16" % (sTMP2, sW))
    raw("s_add_u32 s%d, s%d, s%d" % (sTMP, sTMP, sTMP2))
    raw("s_add_u32 s%d, s18, s%d" % (sOI, sTMP))
    raw("s_addc_u32 s%d, s19, 0" % (sOI + 1))
    raw("s_mov_b32 s%d, 0x10000" % (sOI + 2))
    raw("s_mov_b32 s%d, 0x20000" % (sOI + 3))

    e.valu("v_lshrrev_b32", vFA, 4, V(vLN))
    e.valu("v_add_u32", vFA, S(sROT), vFA)
    e.valu("v_and_b32", vFA, 7, vFA)
    raw("s_lshl_b32 s%d, s%d, 5" % (sTMP, sPQ))
    raw("s_lshl_b32 s%d, s%d, 3" % (sTMP2, sW))
    raw("s_add_u32 s%d, s%d, s%d" % (sTMP, sTMP, sTMP2))
    e.valu("v_add_u32", vFA, S(sTMP), vFA)
    e.valu("v_lshlrev_b32", vFA, 2, vFA)


    for c, fn in max_ops(vS, 0) + max_ops(vS, 1):
        fn()
    full_max()
    for i in range(32):
        e.valu("v_sub_f32", V(vS + i), V(vS + i), vM)
    for i in range(16):
        e.valu("v_sub_f32", V(vC + i), 0, vM)

    raw("s_mov_b32 s%d, 0" % sCNT)
    stamp(3)
    if o.stamp:
        raw("s_memtime s[60:61]")
        raw("s_waitcnt lgkmcnt(0)")
        raw("v_writelane_b32 v31, s60, 6")
        raw("s_mov_b32 s59, 7")

    def body(p):
        G.e.label("L_loop")
        for t4 in range(4):
            tile(4 * p + t4, "loop", "m%d" % t4)
        G.e.raw("s_add_u32 s%d, s%d, 1" % (sCNT, sCNT))
        G.e.raw("s_cmp_lt_u32 s%d, 7" % sCNT)
        G.e.raw("s_cbranch_scc1 L_loop")

    real = G.e
    sim = copy.deepcopy(real)
    G.e = sim
    logs = []
    backs = []
    for p in range(7):
        sim.vm_log = []
        body(p)
        logs.append(list(sim.vm_log))
        backs.append(sim.snapshot())
    over = [min(l[i] for l in logs) for i in range(len(logs[0]))]
    sys.stderr.write("loop vmcnt sites: %s\n" % logs)
    G.e = real
    e = real
    rare.clear()
    e.merge(backs[0])
    e.merge(backs[-1])
    e.vm_log = []
    e.vm_over = over
    body(0)
    e.vm_over = None
    e.vmq = list(sim.vmq)
    for t in range(28, 32):
        tile(t, "tail", "t%d" % t)
    stamp(4)
    if o.stamp:
        raw("s_memtime s[60:61]")
        raw("s_waitcnt lgkmcnt(0)")
        raw("v_writelane_b32 v31, s60, 7")

    l = V(vL0)
    t = V(vT + 1)
    e.valu("v_add_f32", l, l, V(vL1))
    e.valu("v_mov_b32", t, l)
    e.ins("v_permlane32_swap_b32 %s, %s" % (l[0], t[0]), "perm", dst=l[1] + t[1], src=l[1] + t[1])
    e.valu("v_add_f32", l, l, t)
    e.trans("v_rcp_f32", l, l)
    vo2 = V(vT + 2)
    e.valu("v_add_u32", vo2, 4096, V(vLN))
    e.vmtag = "Ost"
    for sg in range(8):
        base = vO + 8 * sg
        for k in range(8):
            e.valu("v_mul_f32", V(base + k), V(base + k), l)
        fr = vQ + 4 * sg
        for k in range(4):
            e.valu("v_cvt_pk_bf16_f32", V(fr + k), V(base + 2 * k), V(base + 2 * k + 1))
        e.buf_store("buffer_store_dwordx4", V(fr, 4), V(vLN) if sg < 4 else vo2, srdWS, 0, (sg & 3) * 1024, "sc1")
    vQA = 1
    raw("s_sub_u32 s%d, s%d, s%d" % (sTMP, sM0W, sM0WW))
    raw("s_add_u32 s%d, s%d, 0x%x" % (sTMP2, sTMP, LDS_V))
    for nb in range(2):
        e.valu("v_add_u32", V(vQA + nb), S(sTMP), V(vRA + nb))
        e.valu("v_add_u32", V(vQA + 2 + nb), S(sTMP2), V(vRA + nb))
    def quarter_reads(q, dstfn):
        for s2 in range(2):
            for nb in range(2):
                for u in range(2):
                    sg = 2 * (q & 3) + s2
                    off = (16 * s2 + 8 * u) * 128
                    if QREG[q] is None:
                        addr = V(vRA + nb)
                    elif QREG[q] < LDS_V:
                        addr, off = V(vQA + nb), off + QREG[q]
                    else:
                        addr, off = V(vQA + 2 + nb), off + QREG[q] - LDS_V
                    e.ds_read("ds_read_b64_tr_b16", dstfn(q >> 2, sg, nb, u), addr, off)

    vW45 = 128
    vAcc = vQ
    vOB = vO

    def need_flag(j, sfx=""):
        raw("s_bitcmp1_b32 s%d, %d" % (sMASK, j))
        raw("s_cbranch_scc1 L_ok_%d" % j)
        e.label("L_spin_%d" % j)
        raw("buffer_load_dword %s, %s, s[%d:%d], 0 offen sc1" % (vF[0], vFA[0], sFL, sFL + 3))
        raw("s_waitcnt vmcnt(0)")
        raw("v_cmp_ne_u32 vcc, 0, %s" % vF[0])
        raw("s_nop 1")
        raw("s_mov_b32 s%d, vcc_lo" % sMASK)
        raw("s_bitcmp1_b32 s%d, %d" % (sMASK, j))
        raw("s_cbranch_scc1 L_ok_%d" % j)
        raw("s_sleep 1")
        raw("s_sub_u32 s%d, s%d, 1" % (sTO, sTO))
        raw("s_cmp_lg_u32 s%d, 0" % sTO)
        raw("s_cbranch_scc1 L_spin_%d" % j)
        raw("s_branch L_done")
        e.label("L_ok_%d" % j)

    def o_loads(j, check=True):
        if check:
            need_flag(j)
        e.vmtag = ("O", j)
        raw("s_lshr_b32 s%d, s%d, 4" % (sR7, sHO + j))
        raw("s_add_u32 s%d, s%d, 0x1000" % (sR19, sR7))
        for sg in range(8):
            e.buf_load("buffer_load_dwordx4", V(vOB + 32 * (j & 1) + 4 * sg, 4), V(vLN), srdOI,
                       S(sR7 if sg < 4 else sR19), (sg & 3) * 1024, "sc1")

    def q45_reads():
        for q in range(8):
            quarter_reads(q, lambda hh, sg, nb, u: V(vW45 + 64 * hh + 8 * sg + 4 * nb + 2 * u, 2))

    def flag_store():
        e.wait_vm("Ost")
        e.valu("v_mov_b32", V(vT), 1)
        raw("s_mov_b64 exec, 1")
        e.vmtag = "flag"
        e.buf_store("buffer_store_dword", V(vT), V(vFZ2), srdFL, 0, 0, "sc1")
        raw("s_mov_b64 exec, -1")

    def wfrag(j, sg, nb):
        if j < 4:
            return A(64 * j + 8 * sg + 4 * nb, 4)
        if j < 6:
            return V(vW45 + 64 * (j - 4) + 8 * sg + 4 * nb, 4)
        return A(64 * (j - 6) + 8 * sg + 4 * nb, 4)

    e.wait_vm("Q45", "poll")
    raw("v_cmp_ne_u32 vcc, 0, %s" % vF[0])
    raw("s_nop 1")
    raw("s_mov_b32 s%d, vcc_lo" % sMASK)
    raw("s_and_b32 s%d, s%d, 3" % (sTMP, sMASK))
    raw("s_cmp_eq_u32 s%d, 3" % sTMP)
    raw("s_cbranch_scc0 L_slow")
    fork = copy.deepcopy(e)
    o_loads(0, False)
    o_loads(1, False)
    q45_reads()
    flag_store()
    e.lgkm0()
    raw("s_branch L_join")
    fast_lines = e.lines
    fork.lines = fast_lines
    G.e = e = fork
    e.label("L_slow")
    q45_reads()
    flag_store()
    e.lgkm0()
    o_loads(0)
    o_loads(1)
    e.label("L_join")
    e.nop(2)
    stamp(50)
    dq = []
    for q in range(8):
        dq += quarter_ops(q, 6, "Q67")
    for j in range(8):
        e.wait_vm(("O", j))
        if j == 0:
            stamp(51)
        for sg in range(8):
            for nb in range(2):
                d = V(vAcc + 16 * nb, 16)
                e.mfma(d, wfrag(j, sg, nb), V(vOB + 32 * (j & 1) + 4 * sg, 4), 0 if (j == 0 and sg == 0) else d)
                if dq and (nb == 0 or j > 0):
                    dq.pop(0)()
        if j + 2 < 8:
            o_loads(j + 2)
        if j == 3:
            assert not dq
            e.wait_vm("Q67")
            for q in range(8):
                quarter_reads(q, lambda hh, sg, nb, u: A(64 * hh + 8 * sg + 4 * nb + 2 * u, 2))
    stamp(52)
    wa = V(7)
    e.valu("v_add_u32", wa, S(sM0WW), V(vLN))
    for q in range(8):
        e.ds_write("ds_write_b128", wa, V(vAcc + 4 * q, 4), q * 1024)
    e.lgkm0()
    e.barrier()
    raw("s_lshl_b32 s%d, s%d, 11" % (sTMP, sW))
    raw("s_add_u32 s%d, s%d, 0x%x" % (sTMP, sTMP, LDS_W))
    ra = V(8)
    e.valu("v_add_u32", ra, S(sTMP), V(vLN))
    for k in range(2):
        for ww in range(4):
            e.ds_read("ds_read_b128", V(64 + 16 * k + 4 * ww, 4), ra, ww * 8192 + k * 1024)
    oa = V(9)
    e.valu("v_bfe_u32", oa, V(vLN), 4, 5)
    e.valu("v_lshlrev_b32", oa, 10, oa)
    e.valu("v_lshrrev_b32", V(10), 9, V(vLN))
    e.valu("v_lshl_add_u32", oa, V(10), 3, oa)
    raw("s_lshl_b32 s%d, s%d, 5" % (sTMP, sW))
    e.valu("v_add_u32", oa, S(sTMP), oa)
    for k in range(2):
        b = 64 + 16 * k
        for c in range(4):
            e.valu("v_add_f32", V(b + c), V(b + c), V(b + 4 + c))
            e.valu("v_add_f32", V(b + 8 + c), V(b + 8 + c), V(b + 12 + c))
            e.valu("v_add_f32", V(b + c), V(b + c), V(b + 8 + c))
        e.valu("v_cvt_pk_bf16_f32", V(12 + 2 * k), V(b), V(b + 1))
        e.valu("v_cvt_pk_bf16_f32", V(13 + 2 * k), V(b + 2), V(b + 3))
        e.buf_store("buffer_store_dwordx2", V(12 + 2 * k, 2), oa, srdOUT, 0, 16 * k)
    if o.stamp:
        e.vmcnt(0)
        stamp(5)
        raw("s_lshl_b32 s47, s2, 2")
        raw("s_add_u32 s47, s47, s%d" % sW)
        raw("s_lshl_b32 s47, s47, 8")
        raw("s_add_u32 s47, s47, 0x%x" % STAMP_OFF)
        raw("s_add_u32 s92, s18, s47")
        raw("s_addc_u32 s93, s19, 0")
        raw("s_mov_b32 s94, 256")
        raw("s_mov_b32 s95, 0x20000")
        e.valu("v_lshrrev_b32", V(30), 2, V(vLN))
        e.buf_store("buffer_store_dword", V(31), V(30), S(92, 4), 0, 0)
    e.label("L_done")
    raw("s_endpgm")
    for lbl, ret, sb in rare:
        gen_rare(lbl, ret, sb)
    for k in range(7):
        e.label("L_wrd_%d" % k)
        wo_step_reads(k)
        e.ldsq = []
        raw("s_branch L_wrd_ret")
    return e


def build(o):
    a = gen(o)
    out = HEADER
    out += "; @launch grid=(256,1,1) block=(256,1,1) lds=163840\n"
    out += '.amdgcn_target "amdgcn-amd-amdhsa--gfx950"\n.text\n'
    out += ".globl %s\n.p2align 8\n.type %s,@function\n%s:\n" % (NAME, NAME, NAME)
    out += a.text()
    out += '.section .rodata,"a"\n'
    out += """.p2align 6
.amdhsa_kernel %s
  .amdhsa_next_free_vgpr 512
  .amdhsa_next_free_sgpr 100
  .amdhsa_accum_offset 256
  .amdhsa_group_segment_fixed_size 0
  .amdhsa_kernarg_size 64
  .amdhsa_user_sgpr_count 2
  .amdhsa_user_sgpr_kernarg_segment_ptr 1
  .amdhsa_system_sgpr_workgroup_id_x 1
.end_amdhsa_kernel
""" % NAME
    sys.stderr.write("%s nops=%d\n" % (a.count, a.nops))
    return out


if __name__ == "__main__":
    o = Opt()
    for arg in sys.argv[2:]:
        k, v = arg.split("=")
        setattr(o, k, v if k in ("kf", "vf", "wof") else int(v))
    open(sys.argv[1], "w").write(build(o))
```

```python
import sys
import struct
import math
import copy
from emit import Emit, V, A, S

NAME = "standalone__mha_block_cached__near_ridge_kernel"

HEADER = """; Kernarg layout for this problem (64 bytes, ptrs only, base s[0:1]):
"""


def f32bits(x):
    return struct.unpack("<I", struct.pack("<f", x))[0]


SCALE = (128 ** -0.5) * math.log2(math.e)
THRESH = 8.0

vKA = 1
vVA = 9
vKD = 13
vVD = 17
vL0, vL1 = 18, 19
vT = 20
vWD = 23
vRA = 24
vCK = 26
vLN = 27
vQ = 32
vO = 64
vS = 128
vC = 192
vKF = 208
vVF = 232
NKF = 6
NVF = 6

sK, sV, sX, sWQ, sWS, sWO, sOI, sOUT, sFL, sDBG = 20, 24, 28, 32, 36, 64, 68, 72, 76, 80
sB, sH, sW, sCNT, sKOFF, sVOFF, sM0W, sTMP, sTMP2 = 40, 41, 42, 43, 44, 45, 46, 47, 48
sRHO, sR19, sR7, sPQ, sNT, sROT, sMASK, sTO, sM0WW = 49, 50, 51, 52, 53, 54, 55, 56, 57
sHO = 84
sXCC, sTRY, sTOFF = 58, 96, 97

LDS_K = 0
LDS_V = 65536
LDS_W = 131072
FLAG_OFF = 0x1000000
STAMP_OFF = 0x4000000


class Opt:
    kf = "nt"
    vf = ""
    stamp = 0
    notile = 0
    wof = ""
    dstep = 2
    stag = 0
    dyn = 1
    wlast = 0


class G:
    e = None


def gen(o):
    G.e = Emit()
    e = G.e
    kflag = o.kf.replace("+", " ")
    vflag = o.vf.replace("+", " ")
    woflag = o.wof.replace("+", " ")

    def raw(t):
        G.e.raw(t)

    def stamp(idx):
        if not o.stamp:
            return
        e = G.e
        assert not e.ldsq
        e.raw("s_memrealtime s[60:61]")
        e.raw("s_waitcnt lgkmcnt(0)")
        if isinstance(idx, int):
            e.raw("v_writelane_b32 v31, s60, %d" % idx)
        else:
            e.raw("s_mov_b32 m0, %s" % idx[0])
            e.raw("s_nop 4")
            e.raw("v_writelane_b32 v31, s60, m0")

    raw("s_cmp_ge_u32 s2, 256")
    raw("s_cbranch_scc1 L_done")
    raw("s_load_dwordx16 s[4:19], s[0:1], 0")
    if o.stamp:
        raw("s_memrealtime s[62:63]")
    e.valu("v_lshrrev_b32", V(vT), 6, V(0))
    e.ins("v_readfirstlane_b32 s%d, v%d" % (sW, vT), "rfl", dst=["s%d" % sW], src=["v%d" % vT])
    raw("s_and_b32 s%d, s2, 1" % sB)
    raw("s_lshl_b32 s%d, s%d, 2" % (sB, sB))
    raw("s_bfe_u32 s%d, s2, 0x20003" % sTMP)
    raw("s_add_u32 s%d, s%d, s%d" % (sB, sB, sTMP))
    raw("s_bfe_u32 s%d, s2, 0x20001" % sH)
    raw("s_lshl_b32 s%d, s%d, 3" % (sH, sH))
    raw("s_lshr_b32 s%d, s2, 5" % sTMP)
    raw("s_add_u32 s%d, s%d, s%d" % (sH, sH, sTMP))
    raw("s_lshl_b32 s%d, s%d, 1" % (sRHO, sB))
    raw("s_add_u32 s%d, s%d, s%d" % (sRHO, sRHO, sH))
    raw("s_mul_i32 s%d, s2, %d" % (sTOFF, o.stag))
    raw("s_lshr_b32 s%d, s2, 5" % sTMP)
    raw("s_add_u32 s%d, s%d, s%d" % (sTOFF, sTOFF, sTMP) if o.stag else "s_nop 0")
    raw("s_and_b32 s%d, s%d, 31" % (sTOFF, sTOFF))
    raw("s_lshl_b32 s%d, s%d, 14" % (sTOFF, sTOFF))
    tb = vKF
    lane = V(tb)
    t_i4, t_i15, t_hf, t_k31, t_a, t_b, t_r, t_cc, t_ds, t_w16, t_i3, t_p7 = (V(tb + 1 + i) for i in range(12))
    e.valu("v_and_b32", lane, 63, V(0))
    e.valu("v_lshrrev_b32", t_i4, 4, lane)
    e.valu("v_and_b32", t_i15, 15, lane)
    e.valu("v_lshrrev_b32", t_hf, 5, lane)
    e.valu("v_and_b32", t_k31, 31, lane)
    e.valu("v_lshrrev_b32", t_r, 2, t_i15)
    e.valu("v_and_b32", t_cc, 3, lane)
    e.valu("v_and_b32", t_ds, 1, t_i4)
    e.valu("v_lshrrev_b32", t_i3, 3, lane)
    e.valu("v_and_b32", t_p7, 7, lane)
    e.valu("v_lshlrev_b32", V(vLN), 4, lane)
    raw("s_lshl_b32 s%d, s%d, 4" % (sTMP, sW))
    e.valu("v_add_u32", t_w16, S(sTMP), t_i4)
    raw("s_lshl_b32 s%d, s%d, 12" % (sM0W, sW))
    raw("s_lshl_b32 s%d, s%d, 13" % (sM0WW, sW))
    raw("s_add_u32 s%d, s%d, 0x%x" % (sM0WW, sM0WW, LDS_W))
    vWQA = vC
    vWW = vC + 4
    vWQL = vC + 5
    vXL = vC + 6
    vXW = vC + 7
    vXR = vC + 9
    vFZ = vC + 13
    e.valu("v_lshlrev_b32", t_a, 2, t_i4)
    e.valu("v_xor_b32", t_a, t_a, t_i15)
    e.valu("v_lshlrev_b32", t_a, 4, t_a)
    e.valu("v_lshl_add_u32", V(vWQL), t_w16, 13, t_a)
    e.valu("v_lshl_add_u32", V(vVD), t_w16, 8, t_a)
    raw("s_lshl_b32 s%d, s%d, 5" % (sTMP, sW))
    e.valu("v_add_u32", t_b, S(sTMP), t_i3)
    for par in range(2):
        e.valu("v_lshrrev_b32", t_a, 1, t_i3)
        e.valu("v_add_u32", t_a, 4 * par, t_a)
        e.valu("v_xor_b32", t_a, t_a, t_p7)
        e.valu("v_lshlrev_b32", t_a, 4, t_a)
        e.valu("v_lshl_add_u32", V(vXW + par), t_b, 10, t_a)
    raw("s_waitcnt lgkmcnt(0)")
    raw("s_lshl_b32 s%d, s%d, 17" % (sTMP2, sB))
    raw("s_add_u32 s%d, s4, s%d" % (sX, sTMP2))
    raw("s_addc_u32 s%d, s5, 0" % (sX + 1))
    raw("s_mov_b32 s%d, 0x20000" % (sX + 2))
    raw("s_mov_b32 s%d, 0x20000" % (sX + 3))
    raw("s_lshl_b32 s%d, s%d, 8" % (sTMP2, sH))
    raw("s_add_u32 s%d, s10, s%d" % (sWQ, sTMP2))
    raw("s_addc_u32 s%d, s11, 0" % (sWQ + 1))
    raw("s_sub_u32 s%d, 0x400000, s%d" % (sWQ + 2, sTMP2))
    raw("s_mov_b32 s%d, 0x20000" % (sWQ + 3))
    raw("s_add_u32 s%d, s18, 0x%x" % (sFL, FLAG_OFF))
    raw("s_addc_u32 s%d, s19, 0" % (sFL + 1))
    raw("s_mov_b32 s%d, 0x1000" % (sFL + 2))
    raw("s_mov_b32 s%d, 0x20000" % (sFL + 3))
    srdK, srdV, srdX, srdWQ, srdWS, srdWO, srdOI, srdOUT, srdFL, srdDBG = (
        S(x, 4) for x in (sK, sV, sX, sWQ, sWS, sWO, sOI, sOUT, sFL, sDBG))
    raw("s_mov_b32 s%d, s16" % sDBG)
    raw("s_mov_b32 s%d, s17" % (sDBG + 1))
    raw("s_mov_b32 s%d, 256" % (sDBG + 2))
    raw("s_mov_b32 s%d, 0x20000" % (sDBG + 3))
    vSL, vSA = V(vT + 1), V(vT + 2)
    raw("s_getreg_b32 s%d, hwreg(HW_REG_XCC_ID)" % sXCC)
    raw("s_and_b32 s%d, s%d, 7" % (sXCC, sXCC))
    raw("s_lshl_b32 s%d, s%d, 2" % (sTMP, sXCC))
    raw("s_add_u32 s%d, s%d, 64" % (sTMP, sTMP))
    e.valu("v_mov_b32", vSA, S(sTMP))
    e.valu("v_mov_b32", vSL, 1)
    raw("s_lshl_b32 s%d, s%d, 2" % (sTMP2, sB))
    raw("s_add_u32 s%d, s%d, s%d" % (sTMP2, sTMP2, sW))
    raw("s_lshl_b32 s%d, s%d, 5" % (sTMP2, sTMP2))
    raw("s_add_u32 s%d, s%d, s%d" % (sTMP2, sTMP2, sH))
    raw("s_lshl_b32 s%d, s%d, 2" % (sTMP, sTMP2))
    e.valu("v_mov_b32", V(vFZ), S(sTMP))
    e.valu("v_mov_b32", t_a, 0)
    raw("s_mov_b64 exec, 1")
    e.vmtag = "fz"
    e.buf_store("buffer_store_dword", t_a, V(vFZ), srdFL, 0, 0, "sc1")
    raw("s_mov_b64 exec, -1")
    raw("s_lshl_b32 s%d, s%d, 13" % (sTMP2, sTMP2))
    raw("s_add_u32 s%d, s18, s%d" % (sWS, sTMP2))
    raw("s_addc_u32 s%d, s19, 0" % (sWS + 1))
    raw("s_mov_b32 s%d, 0x2000" % (sWS + 2))
    raw("s_mov_b32 s%d, 0x20000" % (sWS + 3))

    XWB = [(LDS_V + 32768, LDS_V + 49152), (LDS_W + 16384, LDS_W), (LDS_K + 49152, LDS_V + 16384)]

    def xw_ops(tau):
        wq_base, x_base = XWB[tau % 3]
        ops = []

        def op(kind, j):
            def f():
                e.vmtag = ("xw", tau)
                if kind == "w":
                    if j == 0:
                        raw("s_add_u32 s%d, s%d, %d" % (sTMP, sRHO, tau))
                        raw("s_and_b32 s%d, s%d, 7" % (sTMP, sTMP))
                        raw("s_lshl_b32 s%d, s%d, 7" % (sR7, sTMP))
                    e.salu("s_add_u32", "m0", S(sM0W), wq_base + j * 1024)
                    if j:
                        raw("s_add_u32 s%d, s%d, 0x8000" % (sR19, sR19))
                    else:
                        raw("s_lshl_b32 s%d, s%d, 12" % (sR19, sR7))
                    e.buf_dma(V(vWQL), srdWQ, S(sR19), 0)
                else:
                    e.salu("s_add_u32", "m0", S(sM0W), x_base + j * 1024)
                    if j:
                        raw("s_add_u32 s%d, s%d, 0x2000" % (sR7, sR7))
                    e.buf_dma(V(vXW + (j & 1)), srdX, S(sR7), 0)
            return f
        return [op("w", j) for j in range(4)] + [op("x", j) for j in range(4)]

    def xw_dma(tau):
        for f in xw_ops(tau):
            f()

    xw_dma(0)
    xw_dma(1)

    raw("s_lshl_b32 s%d, s%d, 5" % (sTMP, sB))
    raw("s_add_u32 s%d, s%d, s%d" % (sTMP, sTMP, sH))
    raw("s_lshl_b32 s%d, s%d, 19" % (sTMP2, sTMP))
    raw("s_add_u32 s%d, s6, s%d" % (sK, sTMP2))
    raw("s_addc_u32 s%d, s7, 0" % (sK + 1))
    raw("s_mov_b32 s%d, 0x80000" % (sK + 2))
    raw("s_mov_b32 s%d, 0x20000" % (sK + 3))
    raw("s_add_u32 s%d, s8, s%d" % (sV, sTMP2))
    raw("s_addc_u32 s%d, s9, 0" % (sV + 1))
    raw("s_mov_b32 s%d, 0x80000" % (sV + 2))
    raw("s_mov_b32 s%d, 0x20000" % (sV + 3))
    for j in range(4):
        e.valu("v_add_u32", t_a, 4 * j, t_i4)
        e.valu("v_xor_b32", t_a, t_a, t_i15)
        e.valu("v_lshlrev_b32", t_a, 4, t_a)
        e.valu("v_lshl_add_u32", V(vKD + j), t_w16, 8, t_a)

    def kv_ops(kind, slot, soff_reg, t, pre=None, post=None):
        def op(j):
            def f():
                e = G.e
                e.vmtag = (kind, t)
                e.salu("s_add_u32", "m0", S(sM0W), (LDS_K if kind == "K" else LDS_V) + slot * 16384)
                if j == 0 and pre:
                    for p_ in pre:
                        e.raw(p_)
                if kind == "K":
                    e.buf_dma(V(vKD + j), srdK, S(soff_reg), j * 1024, kflag)
                else:
                    e.buf_dma(V(vVD), srdV, S(soff_reg), j * 1024, vflag)
                if j == 3 and post:
                    e.raw(post)
                    if o.stag:
                        e.raw("s_and_b32 s%d, s%d, 0x7ffff" % (soff_reg, soff_reg))
            return f
        return [op(j) for j in range(4)]

    def kv_init_ops(kind, t):
        reg = sKOFF if kind == "K" else sVOFF
        return kv_ops(kind, t % 4, reg, t, pre=(["s_mov_b32 s%d, s%d" % (reg, sTOFF)] if t == 0 else []),
                      post="s_add_u32 s%d, s%d, 0x4000" % (reg, reg))

    def kv_init(kind, t):
        for f in kv_init_ops(kind, t):
            f()

    if o.stamp:
        raw("v_writelane_b32 v31, s62, 0")
    stamp(1)

    for s in range(8):
        e.valu("v_or_b32", t_a, 2 * s, t_hf)
        e.valu("v_xor_b32", t_a, t_a, t_i15)
        e.valu("v_lshlrev_b32", t_a, 4, t_a)
        e.valu("v_lshl_add_u32", V(vKA + s), t_k31, 8, t_a)

    def tr_addr(dst, blk, blkxor, lo_first, hfshift, rowshift, base):
        e.valu("v_xor_b32", t_a, blk, blkxor)
        e.valu("v_lshlrev_b32", t_a, 1, t_a)
        e.valu("v_add_u32", t_a, t_a, t_ds)
        e.valu("v_lshlrev_b32", t_a, 1, t_a)
        if lo_first:
            e.valu("v_lshrrev_b32", t_b, 1, t_cc)
        else:
            e.valu("v_and_b32", t_b, 1, t_cc)
        e.valu("v_add_u32", t_a, t_a, t_b)
        e.valu("v_lshlrev_b32", t_a, 4, t_a)
        if lo_first:
            e.valu("v_and_b32", t_b, 1, t_cc)
        else:
            e.valu("v_lshrrev_b32", t_b, 1, t_cc)
        e.valu("v_lshl_add_u32", t_a, t_b, 3, t_a)
        e.valu("v_lshl_add_u32", t_b, t_hf, hfshift, t_r)
        e.valu("v_lshl_add_u32", t_a, t_b, rowshift, t_a)
        e.valu("v_add_u32", dst, base, t_a)

    for db in range(4):
        tr_addr(V(vVA + db), db, t_r, True, 2, 8, LDS_V)
        tr_addr(V(vWQA + db), db, t_r, False, 3, 8, LDS_K + 49152)
    t_rh = V(tb + 13)
    e.valu("v_lshrrev_b32", t_rh, 1, t_r)
    for nb in range(2):
        tr_addr(V(vRA + nb), nb, t_rh, True, 2, 7, S(sM0WW))
    e.valu("v_bfe_u32", t_a, t_i3, 1, 1)
    e.valu("v_lshlrev_b32", t_a, 2, t_a)
    e.valu("v_xor_b32", t_a, t_a, t_p7)
    e.valu("v_lshlrev_b32", t_a, 4, t_a)
    e.valu("v_lshl_add_u32", V(vWD), t_i3, 10, t_a)
    raw("s_add_u32 s%d, s%d, 0x%x" % (sTMP, sM0W, LDS_V + 16384))
    for ee in range(4):
        e.valu("v_bfe_u32", t_b, t_k31, 1, 3)
        e.valu("v_or_b32", t_a, 2 * ee, t_hf)
        e.valu("v_xor_b32", t_a, t_a, t_b)
        e.valu("v_lshlrev_b32", t_a, 4, t_a)
        e.valu("v_lshl_add_u32", t_a, t_k31, 7, t_a)
        e.valu("v_add_u32", V(vXR + ee), S(sTMP), t_a)
    NQ = 12
    vQF = vS
    vXF = vKF + 16
    vWQB = vS + 48
    for db in range(4):
        e.valu("v_add_u32", V(vWQB + db), LDS_W + 16384 - (LDS_K + 49152), V(vWQA + db))

    def xread(tau):
        off = XWB[tau % 3][1] - (LDS_V + 16384)
        for ee in range(4):
            e.ds_read("ds_read_b128", V(vXF + 16 * (tau & 1) + 4 * ee, 4), V(vXR + ee), off)

    def qrd(tau, i):
        ee, db = divmod(i, 4)
        fr = vQF + 4 * ((16 * tau + i) % NQ)
        base = XWB[tau % 3][0]
        if base == LDS_W + 16384:
            addr, off = V(vWQB + db), 0
        else:
            addr, off = V(vWQA + db), base - (LDS_K + 49152)
        for u in range(2):
            e.ds_read("ds_read_b64_tr_b16", V(fr + 2 * u, 2), addr, off + (16 * ee + 4 * u) * 256)

    def qmf(tau, i):
        ee, db = divmod(i, 4)
        fr = vQF + 4 * ((16 * tau + i) % NQ)
        first = (tau == 0 and ee == 0)
        e.mfma(V(vO + 16 * db, 16), V(fr, 4), V(vXF + 16 * (tau & 1) + 4 * ee, 4),
               0 if first else V(vO + 16 * db, 16))

    e.wait_vm(("xw", 0))
    e.barrier()
    stamp(46)
    xread(0)
    for i in range(8):
        qrd(0, i)
    KVS = {2: [("K", 0)], 5: [("K", 1)], 6: [("V", 0), ("K", 2)], 7: [("V", 1), ("K", 3)]}
    for tau in range(8):
        dq = xw_ops(tau + 2) if tau + 2 < 8 else []
        for kind, t in KVS.get(tau, []):
            dq += kv_init_ops(kind, t)
        pos = [int((k + 0.5) * 12 / max(len(dq), 1)) for k in range(len(dq))]
        for i in range(12):
            qmf(tau, i)
            if i < 8:
                qrd(tau, i + 8)
            while dq and pos[0] <= i:
                pos.pop(0)
                dq.pop(0)()
        assert not dq
        if tau == 5:
            raw("s_cmp_lg_u32 s%d, 0" % sW)
            raw("s_cbranch_scc1 L_noclaim")
            raw("v_mov_b32 v%d, 0" % vT)
            raw("s_mov_b64 exec, 1")
            raw("buffer_atomic_add %s, v%d, s[%d:%d], 0 offen sc1" % (vSL[0], vT, sDBG, sDBG + 3))
            raw("buffer_atomic_add %s, %s, s[%d:%d], 0 offen sc0 sc1" % (vSL[0], vSA[0], sDBG, sDBG + 3))
            raw("s_mov_b64 exec, -1")
            e.label("L_noclaim")
            claim_mark = e.vm_total
        if tau < 7:
            e.wait_vm(("xw", tau + 1))
            e.lgkm0()
            e.barrier()
            if o.stamp > 1:
                stamp(53 + tau)
            xread(tau + 1)
            for i in range(8):
                qrd(tau + 1, i)
        for i in range(12, 16):
            qmf(tau, i)
    stamp(2)
    v2ops = kv_init_ops("V", 2)
    raw("s_mov_b32 s%d, 0x%x" % (sTMP, f32bits(SCALE)))
    for db in range(4):
        for r in range(0, 16, 2):
            a, b = V(vO + 16 * db + r), V(vO + 16 * db + r + 1)
            e.valu("v_mul_f32", a, S(sTMP), a)
            e.valu("v_mul_f32", b, S(sTMP), b)
            e.valu("v_cvt_pk_bf16_f32", V(vQ + 8 * db + r // 2), a, b)
        v2ops[db]()
    raw("s_cmp_lg_u32 s%d, 0" % sW)
    raw("s_cbranch_scc1 L_nocount")
    raw("s_mov_b32 s%d, 0" % sTRY)
    raw("s_waitcnt vmcnt(%d)" % (e.vm_total - claim_mark))
    if not o.dyn:
        raw("s_branch L_static")
    e.label("L_claim")
    e.ins("v_readfirstlane_b32 s%d, %s" % (sTMP, vSL[0]), "rfl", dst=["s%d" % sTMP], src=vSL[1])
    raw("s_cmp_lt_u32 s%d, 32" % sTMP)
    raw("s_cbranch_scc1 L_claimed")
    raw("s_add_u32 s%d, s%d, 1" % (sTRY, sTRY))
    raw("s_cmp_lt_u32 s%d, 8" % sTRY)
    raw("s_cbranch_scc1 L_retry")
    e.label("L_static")
    raw("s_and_b32 s%d, s2, 7" % sXCC)
    raw("s_lshr_b32 s%d, s2, 3" % sTMP)
    raw("s_branch L_claimed")
    e.label("L_retry")
    raw("s_add_u32 s%d, s%d, 1" % (sXCC, sXCC))
    raw("s_and_b32 s%d, s%d, 7" % (sXCC, sXCC))
    raw("s_lshl_b32 s%d, s%d, 2" % (sTMP, sXCC))
    raw("s_add_u32 s%d, s%d, 64" % (sTMP, sTMP))
    raw("v_mov_b32 %s, s%d" % (vSA[0], sTMP))
    raw("v_mov_b32 %s, 1" % vSL[0])
    raw("s_mov_b64 exec, 1")
    raw("buffer_atomic_add %s, %s, s[%d:%d], 0 offen sc0 sc1" % (vSL[0], vSA[0], sDBG, sDBG + 3))
    raw("s_mov_b64 exec, -1")
    raw("s_waitcnt vmcnt(0)")
    raw("s_branch L_claim")
    e.label("L_claimed")
    raw("s_lshl_b32 s%d, s%d, 5" % (sXCC, sXCC))
    raw("s_add_u32 s%d, s%d, s%d" % (sTMP, sTMP, sXCC))
    raw("v_mov_b32 %s, s%d" % (vSL[0], sTMP))
    raw("v_mov_b32 %s, 0x%x" % (vSA[0], LDS_V + 49152))
    raw("ds_write_b32 %s, %s" % (vSA[0], vSL[0]))
    raw("s_waitcnt lgkmcnt(0)")
    e.label("L_nocount")
    vFZ2 = 28
    e.valu("v_mov_b32", V(vFZ2), V(vFZ))

    vFA, vF = V(29), V(30)
    def kread(slot, i):
        kb, s = divmod(i, 8)
        G.e.ds_read("ds_read_b128", V(vKF + 4 * (i % NKF), 4), V(vKA + s), LDS_K + slot * 16384 + kb * 8192)

    def vread(slot, j):
        ks, db = divmod(j, 4)
        fr = vVF + 4 * (j % NVF)
        for u in range(2):
            G.e.ds_read("ds_read_b64_tr_b16", V(fr + 2 * u, 2), V(vVA + db), slot * 16384 + (16 * ks + 8 * u) * 256)

    def qk_mfma(sb, i, cinit):
        kb, s = divmod(i, 8)
        d = V(sb + 16 * kb, 16)
        c = d if s > 0 else cinit
        G.e.mfma(d, V(vKF + 4 * (i % NKF), 4), V(vQ + 4 * s, 4), c)

    def pv_mfma(sb, j):
        ks, db = divmod(j, 4)
        p = V(sb + 8 * ks, 4)
        d = V(vO + 16 * db, 16)
        G.e.mfma(d, V(vVF + 4 * (j % NVF), 4), p, d)

    def softmax_ops(sb, ks):
        b = sb + 8 * ks
        ex = lambda i: (2, lambda: G.e.trans("v_exp_f32", V(b + i), V(b + i)))
        ad = lambda i: (1, lambda: G.e.valu("v_add_f32", V(vL0 + (i & 1)), V(vL0 + (i & 1)), V(b + i)))
        cv = lambda k: (1, lambda: G.e.valu("v_cvt_pk_bf16_f32", V(b + k), V(b + 2 * k), V(b + 2 * k + 1)))
        return [ex(0), ex(1), ex(2), ex(3), ad(0), ad(1), ex(4), ad(2), ex(5), ad(3), cv(0), ex(6), ad(4),
                ex(7), ad(5), cv(1), ad(6), ad(7), cv(2), cv(3)]

    vM = V(vT)

    def max_ops(sb, half):
        ops = []
        b = sb + 16 * half
        if half == 0:
            ops.append((1, lambda: G.e.valu("v_max3_f32", vM, V(b), V(b + 1), V(b + 2))))
            for k in range(3, 15, 2):
                ops.append((1, lambda k=k: G.e.valu("v_max3_f32", vM, vM, V(b + k), V(b + k + 1))))
            ops.append((1, lambda: G.e.valu("v_max_f32", vM, vM, V(b + 15))))
        else:
            for k in range(0, 16, 2):
                ops.append((1, lambda k=k: G.e.valu("v_max3_f32", vM, vM, V(b + k), V(b + k + 1))))
        return ops

    def full_max():
        e = G.e
        t = V(vT + 1)
        e.valu("v_mov_b32", t, vM)
        e.ins("v_permlane32_swap_b32 %s, %s" % (vM[0], t[0]), "perm", dst=vM[1] + t[1], src=vM[1] + t[1])
        e.valu("v_max_f32", vM, vM, t)

    rare = []

    def gen_rare(lbl, ret, sb):
        e = G.e
        e.label(lbl)
        e.nop(16)
        full_max()
        e.valu("v_max_f32", vM, 0, vM)
        f = V(vT + 2)
        e.ins("v_exp_f32 %s, -%s" % (f[0], vM[0]), "trans", dst=f[1], src=vM[1])
        for i in range(32):
            e.valu("v_sub_f32", V(sb + i), V(sb + i), vM)
        for i in range(16):
            e.valu("v_sub_f32", V(vC + i), V(vC + i), vM)
        for i in range(64):
            e.valu("v_mul_f32", V(vO + i), V(vO + i), f)
        e.valu("v_mul_f32", V(vL0), V(vL0), f)
        e.valu("v_mul_f32", V(vL1), V(vL1), f)
        e.nop(4)
        e.raw("s_branch %s" % ret)

    def wo_ops(m0base_sgpr, m0_imm, soff_sgpr, row0, n, tag):
        def op(i):
            def f():
                e = G.e
                e.vmtag = tag
                e.salu("s_add_u32", "m0", S(m0base_sgpr), m0_imm + i * 1024)
                e.raw("s_add_u32 s%d, s%d, 0x%x" % (sTMP, soff_sgpr, (row0 + 8 * i) * 1024))
                e.buf_dma(V(vWD), srdWO, S(sTMP), 0, woflag)
            return f
        return [op(i) for i in range(n)]

    def wo_step_reads(step):
        e = G.e
        j, half = step >> 1, step & 1
        for sg in range(4):
            for nb in range(2):
                for u in range(2):
                    e.ds_read("ds_read_b64_tr_b16", A(64 * j + 8 * (4 * half + sg) + 4 * nb + 2 * u, 2),
                              V(vRA + nb), (16 * sg + 8 * u) * 128)

    QREG = [LDS_K + 0, LDS_K + 16384, LDS_V + 0, LDS_K + 32768, LDS_V + 16384, LDS_K + 49152, LDS_V + 32768, None]

    def quarter_ops(q, jbase, tag):
        j = jbase + (q >> 2)
        if QREG[q] is None:
            return wo_ops(sM0WW, 0, sHO + j, 32 * (q & 3), 4, tag)
        return wo_ops(sM0W, QREG[q], sHO + j, 32 * (q & 3), 4, tag)

    def quarter_dma(q, jbase, tag):
        for f in quarter_ops(q, jbase, tag):
            f()

    def tile(t, mode, uid):
        e = G.e
        t4 = t % 4
        do_k = t + 4 <= 31
        do_v = t + 3 <= 31
        do_qk = t + 1 <= 31
        cur = vS + 32 * (t4 & 1)
        nxt = vS + 32 * ((t4 + 1) & 1)
        kslot = (t4 + 1) % 4
        vslot = t4 % 4
        vq = []
        marks = {}
        for ks in range(4):
            vq += softmax_ops(cur, ks)
            marks[ks] = len(vq)
        state = {"i": 0}

        def run_upto(n):
            while state["i"] < n:
                vq[state["i"]][1]()
                state["i"] += 1

        def run_budget(budget, lst, st):
            while st["i"] < len(lst) and budget > 0:
                c, fn = lst[st["i"]]
                fn()
                st["i"] += 1
                budget -= c

        if t == 31:
            run_upto(len(vq))
        if o.stamp:
            e.raw("s_add_u32 s59, s59, 1")
        tags = [("K", t + 1), ("V", t)]
        if t4 == 3:
            tags.append(("W", t // 4))
        if t == 31:
            tags.append("cnt")
        e.wait_vm(*tags)
        e.barrier()
        if not o.notile:
            stamp(S(59))
        if t4 == 3:
            if mode == "loop":
                for k in range(7):
                    e.raw("s_cmp_eq_u32 s%d, %d" % (sCNT, k))
                    e.raw("s_cbranch_scc1 L_wrd_%d" % k)
                e.label("L_wrd_ret")
            else:
                wo_step_reads(7)
                e.ldsq = []
                e.raw("s_mov_b32 s%d, 0x20000" % sTO)
                e.label("L_cnt")
                e.ins("v_readfirstlane_b32 s%d, v%d" % (sTMP, vCK), "rfl", dst=["s%d" % sTMP], src=["v%d" % vCK])
                e.raw("s_cmp_ge_u32 s%d, 256" % sTMP)
                e.raw("s_cbranch_scc1 L_cnt_ok")
                e.raw("s_sleep 2")
                e.valu("v_mov_b32", V(vCK), 0)
                e.raw("buffer_load_dword v%d, v%d, s[%d:%d], 0 offen sc1" % (vCK, vCK, sDBG, sDBG + 3))
                e.raw("s_waitcnt vmcnt(0)")
                e.raw("s_sub_u32 s%d, s%d, 1" % (sTO, sTO))
                e.raw("s_cmp_lg_u32 s%d, 0" % sTO)
                e.raw("s_cbranch_scc1 L_cnt")
                e.raw("s_branch L_done")
                e.label("L_cnt_ok")
                e.vmtag = "poll"
                e.buf_load("buffer_load_dword", vF, vFA, srdFL, 0, 0, "sc1")
        if do_qk:
            for i in range(NKF):
                kread(kslot, i)
        dq = []
        if t4 == 0:
            if mode == "loop":
                e.raw("s_lshr_b32 s%d, s%d, 1" % (sTMP2, sCNT))
                e.raw("s_add_u32 s%d, s%d, s%d" % (sTMP2, sTMP2, sROT))
                e.raw("s_and_b32 s%d, s%d, 7" % (sTMP2, sTMP2))
                e.raw("s_lshl_b32 s%d, s%d, 1" % (sTMP2, sTMP2))
                e.raw("s_and_b32 s%d, s%d, 1" % (sTMP, sCNT))
                e.raw("s_add_u32 s%d, s%d, s%d" % (sTMP2, sTMP2, sTMP))
                e.raw("s_lshl_b32 s%d, s%d, 16" % (sTMP2, sTMP2))
                dq += wo_ops(sM0WW, 0, sTMP2, 0, 8, ("W", t // 4))
            else:
                dq += wo_ops(sM0WW, 0, sHO + 3, 64, 8, ("W", 7))
        kq = []
        if do_k:
            kq += kv_ops("K", t4 % 4, sKOFF, t + 4, post="s_add_u32 s%d, s%d, 0x4000" % (sKOFF, sKOFF))
        if do_v:
            kq += kv_ops("V", (t4 + 3) % 4, sVOFF, t + 3, post="s_add_u32 s%d, s%d, 0x4000" % (sVOFF, sVOFF))
        if o.wlast:
            dq = kq + dq
        else:
            dq = dq + kq
        if mode == "tail":
            qs = {28: [0], 29: [1, 2], 30: [3, 4], 31: [5, 6, 7]}[t]
            for q in qs:
                dq += quarter_ops(q, 4, "Q45")
            if t == 30:
                e.vmtag = "cnt"
                e.valu("v_mov_b32", V(vCK), 0)
                e.buf_load("buffer_load_dword", V(vCK), V(vCK), srdDBG, 0, 0, "sc1")

        def dma_next():
            if dq:
                dq.pop(0)()
        mq0 = max_ops(nxt, 0) if do_qk else []
        mq1 = max_ops(nxt, 1) if do_qk else []
        ms0, ms1 = {"i": 0}, {"i": 0}
        if do_qk:
            run_budget(8, vq, state)
            for g in range(16):
                qk_mfma(nxt, g, V(vC, 16))
                if g + NKF < 16:
                    kread(kslot, g + NKF)
                if 6 <= g < 6 + NVF:
                    vread(vslot, g - 6)
                if g % o.dstep == 0:
                    dma_next()
                run_budget(4, vq, state)
                if g >= 11:
                    run_budget(2, mq0, ms0)
        else:
            for j in range(NVF):
                vread(vslot, j)
        for j in range(16):
            ks = j // 4
            run_upto(marks[ks])
            pv_mfma(cur, j)
            if j + NVF < 16:
                vread(vslot, j + NVF)
            if j % o.dstep == 0 or not do_qk:
                dma_next()
            run_budget(4, vq, state)
            if do_qk:
                run_budget(99, mq0, ms0)
                if j >= 10:
                    run_budget(2, mq1, ms1)
        assert state["i"] == len(vq)
        assert not dq
        if do_qk:
            run_budget(99, mq1, ms1)
            e.ins("v_cmp_lt_f32 vcc, 0x%x, %s" % (f32bits(THRESH), vM[0]), "valu", dst=["vcc"], src=vM[1])
            lbl, ret = "L_rare_%s" % uid, "L_ret_%s" % uid
            e.raw("s_cbranch_vccnz %s" % lbl)
            e.label(ret)
            rare.append((lbl, ret, nxt))
        assert not e.ldsq

    e.wait_vm(("K", 0))
    e.barrier()
    e.valu("v_mov_b32", V(vCK), LDS_V + 49152)
    e.ds_read("ds_read_b32", V(vCK), V(vCK), 0)
    for i in range(NKF):
        kread(0, i)
    zi = 0
    for g in range(16):
        qk_mfma(vS, g, 0)
        if g + NKF < 16:
            kread(0, g + NKF)
        for _ in range(4):
            e.valu("v_mov_b32", V(vO + zi), 0)
            zi += 1
    e.valu("v_mov_b32", V(vL0), 0)
    e.valu("v_mov_b32", V(vL1), 0)
    e.ins("v_readfirstlane_b32 s%d, v%d" % (sTMP2, vCK), "rfl", dst=["s%d" % sTMP2], src=["v%d" % vCK])
    raw("s_bfe_u32 s%d, s%d, 0x20005" % (sPQ, sTMP2))
    raw("s_lshl_b32 s%d, s%d, 3" % (sPQ, sPQ))
    raw("s_and_b32 s%d, s%d, 7" % (sTMP, sTMP2))
    raw("s_add_u32 s%d, s%d, s%d" % (sPQ, sPQ, sTMP))
    raw("s_bfe_u32 s%d, s%d, 0x10007" % (sNT, sTMP2))
    raw("s_lshl_b32 s%d, s%d, 2" % (sNT, sNT))
    raw("s_bfe_u32 s%d, s%d, 0x20003" % (sTMP, sTMP2))
    raw("s_add_u32 s%d, s%d, s%d" % (sNT, sNT, sTMP))
    raw("s_lshl_b32 s%d, s%d, 1" % (sROT, sTMP))
    for j in range(8):
        raw("s_add_u32 s%d, s%d, %d" % (sTMP, sROT, j))
        raw("s_and_b32 s%d, s%d, 7" % (sTMP, sTMP))
        raw("s_lshl_b32 s%d, s%d, 17" % (sHO + j, sTMP))
    raw("s_lshl_b32 s%d, s%d, 20" % (sTMP, sW))
    raw("s_lshl_b32 s%d, s%d, 7" % (sTMP2, sNT))
    raw("s_add_u32 s%d, s%d, s%d" % (sTMP, sTMP, sTMP2))
    raw("s_add_u32 s%d, s12, s%d" % (sWO, sTMP))
    raw("s_addc_u32 s%d, s13, 0" % (sWO + 1))
    raw("s_sub_u32 s%d, 0x100000, s%d" % (sWO + 2, sTMP2))
    raw("s_mov_b32 s%d, 0x20000" % (sWO + 3))
    raw("s_lshl_b32 s%d, s%d, 15" % (sTMP, sPQ))
    raw("s_add_u32 s%d, s%d, s%d" % (sTMP, sTMP, sTMP2))
    raw("s_add_u32 s%d, s14, s%d" % (sOUT, sTMP))
    raw("s_addc_u32 s%d, s15, 0" % (sOUT + 1))
    raw("s_sub_u32 s%d, 0x8000, s%d" % (sOUT + 2, sTMP2))
    raw("s_mov_b32 s%d, 0x20000" % (sOUT + 3))
    raw("s_lshl_b32 s%d, s%d, 18" % (sTMP, sPQ))
    raw("s_lshl_b32 s%d, s%d, 16" % (sTMP2, sW))
    raw("s_add_u32 s%d, s%d, s%d" % (sTMP, sTMP, sTMP2))
    raw("s_add_u32 s%d, s18, s%d" % (sOI, sTMP))
    raw("s_addc_u32 s%d, s19, 0" % (sOI + 1))
    raw("s_mov_b32 s%d, 0x10000" % (sOI + 2))
    raw("s_mov_b32 s%d, 0x20000" % (sOI + 3))

    e.valu("v_lshrrev_b32", vFA, 4, V(vLN))
    e.valu("v_add_u32", vFA, S(sROT), vFA)
    e.valu("v_and_b32", vFA, 7, vFA)
    raw("s_lshl_b32 s%d, s%d, 5" % (sTMP, sPQ))
    raw("s_lshl_b32 s%d, s%d, 3" % (sTMP2, sW))
    raw("s_add_u32 s%d, s%d, s%d" % (sTMP, sTMP, sTMP2))
    e.valu("v_add_u32", vFA, S(sTMP), vFA)
    e.valu("v_lshlrev_b32", vFA, 2, vFA)


    for c, fn in max_ops(vS, 0) + max_ops(vS, 1):
        fn()
    full_max()
    for i in range(32):
        e.valu("v_sub_f32", V(vS + i), V(vS + i), vM)
    for i in range(16):
        e.valu("v_sub_f32", V(vC + i), 0, vM)

    raw("s_mov_b32 s%d, 0" % sCNT)
    stamp(3)
    if o.stamp:
        raw("s_memtime s[60:61]")
        raw("s_waitcnt lgkmcnt(0)")
        raw("v_writelane_b32 v31, s60, 6")
        raw("s_mov_b32 s59, 7")

    def body(p):
        G.e.label("L_loop")
        for t4 in range(4):
            tile(4 * p + t4, "loop", "m%d" % t4)
        G.e.raw("s_add_u32 s%d, s%d, 1" % (sCNT, sCNT))
        G.e.raw("s_cmp_lt_u32 s%d, 7" % sCNT)
        G.e.raw("s_cbranch_scc1 L_loop")

    real = G.e
    sim = copy.deepcopy(real)
    G.e = sim
    logs = []
    backs = []
    for p in range(7):
        sim.vm_log = []
        body(p)
        logs.append(list(sim.vm_log))
        backs.append(sim.snapshot())
    over = [min(l[i] for l in logs) for i in range(len(logs[0]))]
    sys.stderr.write("loop vmcnt sites: %s\n" % logs)
    G.e = real
    e = real
    rare.clear()
    e.merge(backs[0])
    e.merge(backs[-1])
    e.vm_log = []
    e.vm_over = over
    body(0)
    e.vm_over = None
    e.vmq = list(sim.vmq)
    for t in range(28, 32):
        tile(t, "tail", "t%d" % t)
    stamp(4)
    if o.stamp:
        raw("s_memtime s[60:61]")
        raw("s_waitcnt lgkmcnt(0)")
        raw("v_writelane_b32 v31, s60, 7")

    l = V(vL0)
    t = V(vT + 1)
    e.valu("v_add_f32", l, l, V(vL1))
    e.valu("v_mov_b32", t, l)
    e.ins("v_permlane32_swap_b32 %s, %s" % (l[0], t[0]), "perm", dst=l[1] + t[1], src=l[1] + t[1])
    e.valu("v_add_f32", l, l, t)
    e.trans("v_rcp_f32", l, l)
    vo2 = V(vT + 2)
    e.valu("v_add_u32", vo2, 4096, V(vLN))
    e.vmtag = "Ost"
    for sg in range(8):
        base = vO + 8 * sg
        for k in range(8):
            e.valu("v_mul_f32", V(base + k), V(base + k), l)
        fr = vQ + 4 * sg
        for k in range(4):
            e.valu("v_cvt_pk_bf16_f32", V(fr + k), V(base + 2 * k), V(base + 2 * k + 1))
        e.buf_store("buffer_store_dwordx4", V(fr, 4), V(vLN) if sg < 4 else vo2, srdWS, 0, (sg & 3) * 1024, "sc1")
    vQA = 1
    raw("s_sub_u32 s%d, s%d, s%d" % (sTMP, sM0W, sM0WW))
    raw("s_add_u32 s%d, s%d, 0x%x" % (sTMP2, sTMP, LDS_V))
    for nb in range(2):
        e.valu("v_add_u32", V(vQA + nb), S(sTMP), V(vRA + nb))
        e.valu("v_add_u32", V(vQA + 2 + nb), S(sTMP2), V(vRA + nb))
    def quarter_reads(q, dstfn):
        for s2 in range(2):
            for nb in range(2):
                for u in range(2):
                    sg = 2 * (q & 3) + s2
                    off = (16 * s2 + 8 * u) * 128
                    if QREG[q] is None:
                        addr = V(vRA + nb)
                    elif QREG[q] < LDS_V:
                        addr, off = V(vQA + nb), off + QREG[q]
                    else:
                        addr, off = V(vQA + 2 + nb), off + QREG[q] - LDS_V
                    e.ds_read("ds_read_b64_tr_b16", dstfn(q >> 2, sg, nb, u), addr, off)

    vW45 = 128
    vAcc = vQ
    vOB = vO

    def need_flag(j, sfx=""):
        raw("s_bitcmp1_b32 s%d, %d" % (sMASK, j))
        raw("s_cbranch_scc1 L_ok_%d" % j)
        e.label("L_spin_%d" % j)
        raw("buffer_load_dword %s, %s, s[%d:%d], 0 offen sc1" % (vF[0], vFA[0], sFL, sFL + 3))
        raw("s_waitcnt vmcnt(0)")
        raw("v_cmp_ne_u32 vcc, 0, %s" % vF[0])
        raw("s_nop 1")
        raw("s_mov_b32 s%d, vcc_lo" % sMASK)
        raw("s_bitcmp1_b32 s%d, %d" % (sMASK, j))
        raw("s_cbranch_scc1 L_ok_%d" % j)
        raw("s_sleep 1")
        raw("s_sub_u32 s%d, s%d, 1" % (sTO, sTO))
        raw("s_cmp_lg_u32 s%d, 0" % sTO)
        raw("s_cbranch_scc1 L_spin_%d" % j)
        raw("s_branch L_done")
        e.label("L_ok_%d" % j)

    def o_loads(j, check=True):
        if check:
            need_flag(j)
        e.vmtag = ("O", j)
        raw("s_lshr_b32 s%d, s%d, 4" % (sR7, sHO + j))
        raw("s_add_u32 s%d, s%d, 0x1000" % (sR19, sR7))
        for sg in range(8):
            e.buf_load("buffer_load_dwordx4", V(vOB + 32 * (j & 1) + 4 * sg, 4), V(vLN), srdOI,
                       S(sR7 if sg < 4 else sR19), (sg & 3) * 1024, "sc1")

    def q45_reads():
        for q in range(8):
            quarter_reads(q, lambda hh, sg, nb, u: V(vW45 + 64 * hh + 8 * sg + 4 * nb + 2 * u, 2))

    def flag_store():
        e.wait_vm("Ost")
        e.valu("v_mov_b32", V(vT), 1)
        raw("s_mov_b64 exec, 1")
        e.vmtag = "flag"
        e.buf_store("buffer_store_dword", V(vT), V(vFZ2), srdFL, 0, 0, "sc1")
        raw("s_mov_b64 exec, -1")

    def wfrag(j, sg, nb):
        if j < 4:
            return A(64 * j + 8 * sg + 4 * nb, 4)
        if j < 6:
            return V(vW45 + 64 * (j - 4) + 8 * sg + 4 * nb, 4)
        return A(64 * (j - 6) + 8 * sg + 4 * nb, 4)

    e.wait_vm("Q45", "poll")
    raw("v_cmp_ne_u32 vcc, 0, %s" % vF[0])
    raw("s_nop 1")
    raw("s_mov_b32 s%d, vcc_lo" % sMASK)
    raw("s_and_b32 s%d, s%d, 3" % (sTMP, sMASK))
    raw("s_cmp_eq_u32 s%d, 3" % sTMP)
    raw("s_cbranch_scc0 L_slow")
    fork = copy.deepcopy(e)
    o_loads(0, False)
    o_loads(1, False)
    q45_reads()
    flag_store()
    e.lgkm0()
    raw("s_branch L_join")
    fast_lines = e.lines
    fork.lines = fast_lines
    G.e = e = fork
    e.label("L_slow")
    q45_reads()
    flag_store()
    e.lgkm0()
    o_loads(0)
    o_loads(1)
    e.label("L_join")
    e.nop(2)
    stamp(50)
    dq = []
    for q in range(8):
        dq += quarter_ops(q, 6, "Q67")
    for j in range(8):
        e.wait_vm(("O", j))
        if j == 0:
            stamp(51)
        for sg in range(8):
            for nb in range(2):
                d = V(vAcc + 16 * nb, 16)
                e.mfma(d, wfrag(j, sg, nb), V(vOB + 32 * (j & 1) + 4 * sg, 4), 0 if (j == 0 and sg == 0) else d)
                if dq and (nb == 0 or j > 0):
                    dq.pop(0)()
        if j + 2 < 8:
            o_loads(j + 2)
        if j == 3:
            assert not dq
            e.wait_vm("Q67")
            for q in range(8):
                quarter_reads(q, lambda hh, sg, nb, u: A(64 * hh + 8 * sg + 4 * nb + 2 * u, 2))
    stamp(52)
    wa = V(7)
    e.valu("v_add_u32", wa, S(sM0WW), V(vLN))
    for q in range(8):
        e.ds_write("ds_write_b128", wa, V(vAcc + 4 * q, 4), q * 1024)
    e.lgkm0()
    e.barrier()
    raw("s_lshl_b32 s%d, s%d, 11" % (sTMP, sW))
    raw("s_add_u32 s%d, s%d, 0x%x" % (sTMP, sTMP, LDS_W))
    ra = V(8)
    e.valu("v_add_u32", ra, S(sTMP), V(vLN))
    for k in range(2):
        for ww in range(4):
            e.ds_read("ds_read_b128", V(64 + 16 * k + 4 * ww, 4), ra, ww * 8192 + k * 1024)
    oa = V(9)
    e.valu("v_bfe_u32", oa, V(vLN), 4, 5)
    e.valu("v_lshlrev_b32", oa, 10, oa)
    e.valu("v_lshrrev_b32", V(10), 9, V(vLN))
    e.valu("v_lshl_add_u32", oa, V(10), 3, oa)
    raw("s_lshl_b32 s%d, s%d, 5" % (sTMP, sW))
    e.valu("v_add_u32", oa, S(sTMP), oa)
    for k in range(2):
        b = 64 + 16 * k
        for c in range(4):
            e.valu("v_add_f32", V(b + c), V(b + c), V(b + 4 + c))
            e.valu("v_add_f32", V(b + 8 + c), V(b + 8 + c), V(b + 12 + c))
            e.valu("v_add_f32", V(b + c), V(b + c), V(b + 8 + c))
        e.valu("v_cvt_pk_bf16_f32", V(12 + 2 * k), V(b), V(b + 1))
        e.valu("v_cvt_pk_bf16_f32", V(13 + 2 * k), V(b + 2), V(b + 3))
        e.buf_store("buffer_store_dwordx2", V(12 + 2 * k, 2), oa, srdOUT, 0, 16 * k)
    if o.stamp:
        e.vmcnt(0)
        stamp(5)
        raw("s_lshl_b32 s47, s2, 2")
        raw("s_add_u32 s47, s47, s%d" % sW)
        raw("s_lshl_b32 s47, s47, 8")
        raw("s_add_u32 s47, s47, 0x%x" % STAMP_OFF)
        raw("s_add_u32 s92, s18, s47")
        raw("s_addc_u32 s93, s19, 0")
        raw("s_mov_b32 s94, 256")
        raw("s_mov_b32 s95, 0x20000")
        e.valu("v_lshrrev_b32", V(30), 2, V(vLN))
        e.buf_store("buffer_store_dword", V(31), V(30), S(92, 4), 0, 0)
    e.label("L_done")
    raw("s_endpgm")
    for lbl, ret, sb in rare:
        gen_rare(lbl, ret, sb)
    for k in range(7):
        e.label("L_wrd_%d" % k)
        wo_step_reads(k)
        e.ldsq = []
        raw("s_branch L_wrd_ret")
    return e


def build(o):
    a = gen(o)
    out = HEADER
    out += "; @launch grid=(256,1,1) block=(256,1,1) lds=163840\n"
    out += '.amdgcn_target "amdgcn-amd-amdhsa--gfx950"\n.text\n'
    out += ".globl %s\n.p2align 8\n.type %s,@function\n%s:\n" % (NAME, NAME, NAME)
    out += a.text()
    out += '.section .rodata,"a"\n'
    out += """.p2align 6
.amdhsa_kernel %s
  .amdhsa_next_free_vgpr 512
  .amdhsa_next_free_sgpr 100
  .amdhsa_accum_offset 256
  .amdhsa_group_segment_fixed_size 0
  .amdhsa_kernarg_size 64
  .amdhsa_user_sgpr_count 2
  .amdhsa_user_sgpr_kernarg_segment_ptr 1
  .amdhsa_system_sgpr_workgroup_id_x 1
.end_amdhsa_kernel
""" % NAME
    sys.stderr.write("%s nops=%d\n" % (a.count, a.nops))
    return out


if __name__ == "__main__":
    o = Opt()
    for arg in sys.argv[2:]:
        k, v = arg.split("=")
        setattr(o, k, v if k in ("kf", "vf", "wof") else int(v))
    open(sys.argv[1], "w").write(build(o))
```

```python
import sys
import struct
import math
import copy
from emit import Emit, V, A, S

NAME = "standalone__mha_block_cached__near_ridge_kernel"

HEADER = """; Kernarg layout for this problem (64 bytes, ptrs only, base s[0:1]):
"""


def f32bits(x):
    return struct.unpack("<I", struct.pack("<f", x))[0]


SCALE = (128 ** -0.5) * math.log2(math.e)
THRESH = 8.0

vKA = 1
vVA = 9
vKD = 13
vVD = 17
vL0, vL1 = 18, 19
vT = 20
vWD = 23
vRA = 24
vCK = 26
vLN = 27
vQ = 32
vO = 64
vS = 128
vC = 192
vKF = 208
vVF = 232
NKF = 6
NVF = 6

sK, sV, sX, sWQ, sWS, sWO, sOI, sOUT, sFL, sDBG = 20, 24, 28, 32, 36, 64, 68, 72, 76, 80
sB, sH, sW, sCNT, sKOFF, sVOFF, sM0W, sTMP, sTMP2 = 40, 41, 42, 43, 44, 45, 46, 47, 48
sRHO, sR19, sR7, sPQ, sNT, sROT, sMASK, sTO, sM0WW = 49, 50, 51, 52, 53, 54, 55, 56, 57
sHO = 84
sXCC, sTRY, sTOFF = 58, 96, 97

LDS_K = 0
LDS_V = 65536
LDS_W = 131072
FLAG_OFF = 0x1000000
STAMP_OFF = 0x4000000


class Opt:
    kf = "nt"
    vf = ""
    stamp = 0
    notile = 0
    wof = ""
    dstep = 2
    early67 = 1
    pro = 2
    sdbg = 0
    stag = 0
    dyn = 1
    wlast = 1
    kstep = 1


class G:
    e = None


def gen(o):
    G.e = Emit()
    e = G.e
    kflag = o.kf.replace("+", " ")
    vflag = o.vf.replace("+", " ")
    woflag = o.wof.replace("+", " ")

    def raw(t):
        G.e.raw(t)

    def stamp(idx):
        if not o.stamp:
            return
        e = G.e
        assert not e.ldsq
        e.raw("s_memrealtime s[60:61]")
        e.raw("s_waitcnt lgkmcnt(0)")
        if isinstance(idx, int):
            e.raw("v_writelane_b32 v31, s60, %d" % idx)
        else:
            e.raw("s_mov_b32 m0, %s" % idx[0])
            e.raw("s_nop 4")
            e.raw("v_writelane_b32 v31, s60, m0")

    raw("s_cmp_ge_u32 s2, 256")
    raw("s_cbranch_scc1 L_done")
    raw("s_load_dwordx16 s[4:19], s[0:1], 0")
    if o.stamp:
        raw("s_memrealtime s[62:63]")
    e.valu("v_lshrrev_b32", V(vT), 6, V(0))
    e.ins("v_readfirstlane_b32 s%d, v%d" % (sW, vT), "rfl", dst=["s%d" % sW], src=["v%d" % vT])
    raw("s_and_b32 s%d, s2, 1" % sB)
    raw("s_lshl_b32 s%d, s%d, 2" % (sB, sB))
    raw("s_bfe_u32 s%d, s2, 0x20003" % sTMP)
    raw("s_add_u32 s%d, s%d, s%d" % (sB, sB, sTMP))
    raw("s_bfe_u32 s%d, s2, 0x20001" % sH)
    raw("s_lshl_b32 s%d, s%d, 3" % (sH, sH))
    raw("s_lshr_b32 s%d, s2, 5" % sTMP)
    raw("s_add_u32 s%d, s%d, s%d" % (sH, sH, sTMP))
    raw("s_lshl_b32 s%d, s%d, 1" % (sRHO, sB))
    raw("s_add_u32 s%d, s%d, s%d" % (sRHO, sRHO, sH))
    raw("s_mul_i32 s%d, s2, %d" % (sTOFF, o.stag))
    raw("s_lshr_b32 s%d, s2, 5" % sTMP)
    raw("s_add_u32 s%d, s%d, s%d" % (sTOFF, sTOFF, sTMP) if o.stag else "s_nop 0")
    raw("s_and_b32 s%d, s%d, 31" % (sTOFF, sTOFF))
    raw("s_lshl_b32 s%d, s%d, 14" % (sTOFF, sTOFF))
    tb = vKF
    lane = V(tb)
    t_i4, t_i15, t_hf, t_k31, t_a, t_b, t_r, t_cc, t_ds, t_w16, t_i3, t_p7 = (V(tb + 1 + i) for i in range(12))
    e.valu("v_and_b32", lane, 63, V(0))
    e.valu("v_lshrrev_b32", t_i4, 4, lane)
    e.valu("v_and_b32", t_i15, 15, lane)
    e.valu("v_lshrrev_b32", t_hf, 5, lane)
    e.valu("v_and_b32", t_k31, 31, lane)
    e.valu("v_lshrrev_b32", t_r, 2, t_i15)
    e.valu("v_and_b32", t_cc, 3, lane)
    e.valu("v_and_b32", t_ds, 1, t_i4)
    e.valu("v_lshrrev_b32", t_i3, 3, lane)
    e.valu("v_and_b32", t_p7, 7, lane)
    e.valu("v_lshlrev_b32", V(vLN), 4, lane)
    raw("s_lshl_b32 s%d, s%d, 4" % (sTMP, sW))
    e.valu("v_add_u32", t_w16, S(sTMP), t_i4)
    raw("s_lshl_b32 s%d, s%d, 12" % (sM0W, sW))
    raw("s_lshl_b32 s%d, s%d, 13" % (sM0WW, sW))
    raw("s_add_u32 s%d, s%d, 0x%x" % (sM0WW, sM0WW, LDS_W))
    vWQA = vC
    vWW = vC + 4
    vWQL = vC + 5
    vXL = vC + 6
    vXW = vC + 7
    vXR = vC + 9
    vFZ = vC + 13
    e.valu("v_lshlrev_b32", t_a, 2, t_i4)
    e.valu("v_xor_b32", t_a, t_a, t_i15)
    e.valu("v_lshlrev_b32", t_a, 4, t_a)
    e.valu("v_lshl_add_u32", V(vWQL), t_w16, 13, t_a)
    e.valu("v_lshl_add_u32", V(vVD), t_w16, 8, t_a)
    raw("s_lshl_b32 s%d, s%d, 5" % (sTMP, sW))
    e.valu("v_add_u32", t_b, S(sTMP), t_i3)
    for par in range(2):
        e.valu("v_lshrrev_b32", t_a, 1, t_i3)
        e.valu("v_add_u32", t_a, 4 * par, t_a)
        e.valu("v_xor_b32", t_a, t_a, t_p7)
        e.valu("v_lshlrev_b32", t_a, 4, t_a)
        e.valu("v_lshl_add_u32", V(vXW + par), t_b, 10, t_a)
    raw("s_waitcnt lgkmcnt(0)")
    raw("s_lshl_b32 s%d, s%d, 17" % (sTMP2, sB))
    raw("s_add_u32 s%d, s4, s%d" % (sX, sTMP2))
    raw("s_addc_u32 s%d, s5, 0" % (sX + 1))
    raw("s_mov_b32 s%d, 0x20000" % (sX + 2))
    raw("s_mov_b32 s%d, 0x20000" % (sX + 3))
    raw("s_lshl_b32 s%d, s%d, 8" % (sTMP2, sH))
    raw("s_add_u32 s%d, s10, s%d" % (sWQ, sTMP2))
    raw("s_addc_u32 s%d, s11, 0" % (sWQ + 1))
    raw("s_sub_u32 s%d, 0x400000, s%d" % (sWQ + 2, sTMP2))
    raw("s_mov_b32 s%d, 0x20000" % (sWQ + 3))
    raw("s_add_u32 s%d, s18, 0x%x" % (sFL, FLAG_OFF))
    raw("s_addc_u32 s%d, s19, 0" % (sFL + 1))
    raw("s_mov_b32 s%d, 0x1000" % (sFL + 2))
    raw("s_mov_b32 s%d, 0x20000" % (sFL + 3))
    srdK, srdV, srdX, srdWQ, srdWS, srdWO, srdOI, srdOUT, srdFL, srdDBG = (
        S(x, 4) for x in (sK, sV, sX, sWQ, sWS, sWO, sOI, sOUT, sFL, sDBG))
    raw("s_mov_b32 s%d, s16" % sDBG)
    raw("s_mov_b32 s%d, s17" % (sDBG + 1))
    raw("s_mov_b32 s%d, 256" % (sDBG + 2))
    raw("s_mov_b32 s%d, 0x20000" % (sDBG + 3))
    vSL, vSA = V(vT + 1), V(vT + 2)
    raw("s_getreg_b32 s%d, hwreg(HW_REG_XCC_ID)" % sXCC)
    raw("s_and_b32 s%d, s%d, 7" % (sXCC, sXCC))
    raw("s_lshl_b32 s%d, s%d, 2" % (sTMP, sXCC))
    raw("s_add_u32 s%d, s%d, 64" % (sTMP, sTMP))
    e.valu("v_mov_b32", vSA, S(sTMP))
    e.valu("v_mov_b32", vSL, 1)
    raw("s_lshl_b32 s%d, s%d, 2" % (sTMP2, sB))
    raw("s_add_u32 s%d, s%d, s%d" % (sTMP2, sTMP2, sW))
    raw("s_lshl_b32 s%d, s%d, 5" % (sTMP2, sTMP2))
    raw("s_add_u32 s%d, s%d, s%d" % (sTMP2, sTMP2, sH))
    raw("s_lshl_b32 s%d, s%d, 2" % (sTMP, sTMP2))
    e.valu("v_mov_b32", V(vFZ), S(sTMP))
    e.valu("v_mov_b32", t_a, 0)
    raw("s_mov_b64 exec, 1")
    e.vmtag = "fz"
    e.buf_store("buffer_store_dword", t_a, V(vFZ), srdFL, 0, 0, "sc1")
    raw("s_mov_b64 exec, -1")
    raw("s_lshl_b32 s%d, s%d, 13" % (sTMP2, sTMP2))
    raw("s_add_u32 s%d, s18, s%d" % (sWS, sTMP2))
    raw("s_addc_u32 s%d, s19, 0" % (sWS + 1))
    raw("s_mov_b32 s%d, 0x2000" % (sWS + 2))
    raw("s_mov_b32 s%d, 0x20000" % (sWS + 3))

    BUF = [(LDS_K, LDS_K + 16384), (LDS_K + 32768, LDS_V), (LDS_K + 49152, LDS_V + 16384),
           (LDS_V + 32768, LDS_V + 49152), (LDS_W + 16384, LDS_W)]
    XWB = [BUF[i] for i in ((0, 1, 2, 3, 4, 2, 3, 4) if o.pro == 0 else (2, 3, 4, 0, 1, 2, 3, 4))]

    def xw_ops(tau):
        wq_base, x_base = XWB[tau]
        ops = []

        def op(kind, j):
            def f():
                e.vmtag = ("xw", tau)
                if kind == "w":
                    if j == 0:
                        raw("s_add_u32 s%d, s%d, %d" % (sTMP, sRHO, tau))
                        raw("s_and_b32 s%d, s%d, 7" % (sTMP, sTMP))
                        raw("s_lshl_b32 s%d, s%d, 7" % (sR7, sTMP))
                    e.salu("s_add_u32", "m0", S(sM0W), wq_base + j * 1024)
                    if j:
                        raw("s_add_u32 s%d, s%d, 0x8000" % (sR19, sR19))
                    else:
                        raw("s_lshl_b32 s%d, s%d, 12" % (sR19, sR7))
                    e.buf_dma(V(vWQL), srdWQ, S(sR19), 0)
                else:
                    e.salu("s_add_u32", "m0", S(sM0W), x_base + j * 1024)
                    if j:
                        raw("s_add_u32 s%d, s%d, 0x2000" % (sR7, sR7))
                    e.buf_dma(V(vXW + (j & 1)), srdX, S(sR7), 0)
            return f
        return [op("w", j) for j in range(4)] + [op("x", j) for j in range(4)]

    def xw_dma(tau):
        for f in xw_ops(tau):
            f()

    xw_dma(0)
    xw_dma(1)
    if o.pro == 0:
        xw_dma(2)

    raw("s_lshl_b32 s%d, s%d, 5" % (sTMP, sB))
    raw("s_add_u32 s%d, s%d, s%d" % (sTMP, sTMP, sH))
    raw("s_lshl_b32 s%d, s%d, 19" % (sTMP2, sTMP))
    raw("s_add_u32 s%d, s6, s%d" % (sK, sTMP2))
    raw("s_addc_u32 s%d, s7, 0" % (sK + 1))
    raw("s_mov_b32 s%d, 0x80000" % (sK + 2))
    raw("s_mov_b32 s%d, 0x20000" % (sK + 3))
    raw("s_add_u32 s%d, s8, s%d" % (sV, sTMP2))
    raw("s_addc_u32 s%d, s9, 0" % (sV + 1))
    raw("s_mov_b32 s%d, 0x80000" % (sV + 2))
    raw("s_mov_b32 s%d, 0x20000" % (sV + 3))
    for j in range(4):
        e.valu("v_add_u32", t_a, 4 * j, t_i4)
        e.valu("v_xor_b32", t_a, t_a, t_i15)
        e.valu("v_lshlrev_b32", t_a, 4, t_a)
        e.valu("v_lshl_add_u32", V(vKD + j), t_w16, 8, t_a)

    def kv_ops(kind, slot, soff_reg, t, pre=None, post=None):
        def op(j):
            def f():
                e = G.e
                e.vmtag = (kind, t)
                e.salu("s_add_u32", "m0", S(sM0W), (LDS_K if kind == "K" else LDS_V) + slot * 16384)
                if j == 0 and pre:
                    for p_ in pre:
                        e.raw(p_)
                if kind == "K":
                    e.buf_dma(V(vKD + j), srdK, S(soff_reg), j * 1024, kflag)
                else:
                    e.buf_dma(V(vVD), srdV, S(soff_reg), j * 1024, vflag)
                if j == 3 and post:
                    e.raw(post)
                    if o.stag:
                        e.raw("s_and_b32 s%d, s%d, 0x7ffff" % (soff_reg, soff_reg))
            return f
        return [op(j) for j in range(4)]

    def kv_init_ops(kind, t):
        reg = sKOFF if kind == "K" else sVOFF
        return kv_ops(kind, t % 4, reg, t, pre=(["s_mov_b32 s%d, s%d" % (reg, sTOFF)] if t == 0 else []),
                      post="s_add_u32 s%d, s%d, 0x4000" % (reg, reg))

    def kv_init(kind, t):
        for f in kv_init_ops(kind, t):
            f()

    if o.stamp:
        raw("v_writelane_b32 v31, s62, 0")
    stamp(1)

    for s in range(8):
        e.valu("v_or_b32", t_a, 2 * s, t_hf)
        e.valu("v_xor_b32", t_a, t_a, t_i15)
        e.valu("v_lshlrev_b32", t_a, 4, t_a)
        e.valu("v_lshl_add_u32", V(vKA + s), t_k31, 8, t_a)

    def tr_addr(dst, blk, blkxor, lo_first, hfshift, rowshift, base):
        e.valu("v_xor_b32", t_a, blk, blkxor)
        e.valu("v_lshlrev_b32", t_a, 1, t_a)
        e.valu("v_add_u32", t_a, t_a, t_ds)
        e.valu("v_lshlrev_b32", t_a, 1, t_a)
        if lo_first:
            e.valu("v_lshrrev_b32", t_b, 1, t_cc)
        else:
            e.valu("v_and_b32", t_b, 1, t_cc)
        e.valu("v_add_u32", t_a, t_a, t_b)
        e.valu("v_lshlrev_b32", t_a, 4, t_a)
        if lo_first:
            e.valu("v_and_b32", t_b, 1, t_cc)
        else:
            e.valu("v_lshrrev_b32", t_b, 1, t_cc)
        e.valu("v_lshl_add_u32", t_a, t_b, 3, t_a)
        e.valu("v_lshl_add_u32", t_b, t_hf, hfshift, t_r)
        e.valu("v_lshl_add_u32", t_a, t_b, rowshift, t_a)
        e.valu("v_add_u32", dst, base, t_a)

    for db in range(4):
        tr_addr(V(vVA + db), db, t_r, True, 2, 8, LDS_V)
        tr_addr(V(vWQA + db), db, t_r, False, 3, 8, 0)
    t_rh = V(tb + 13)
    e.valu("v_lshrrev_b32", t_rh, 1, t_r)
    for nb in range(2):
        tr_addr(V(vRA + nb), nb, t_rh, True, 2, 7, S(sM0WW))
    e.valu("v_bfe_u32", t_a, t_i3, 1, 1)
    e.valu("v_lshlrev_b32", t_a, 2, t_a)
    e.valu("v_xor_b32", t_a, t_a, t_p7)
    e.valu("v_lshlrev_b32", t_a, 4, t_a)
    e.valu("v_lshl_add_u32", V(vWD), t_i3, 10, t_a)
    raw("s_add_u32 s%d, s%d, 0x%x" % (sTMP, sM0W, LDS_K + 16384))
    for ee in range(4):
        e.valu("v_bfe_u32", t_b, t_k31, 1, 3)
        e.valu("v_or_b32", t_a, 2 * ee, t_hf)
        e.valu("v_xor_b32", t_a, t_a, t_b)
        e.valu("v_lshlrev_b32", t_a, 4, t_a)
        e.valu("v_lshl_add_u32", t_a, t_k31, 7, t_a)
        e.valu("v_add_u32", V(vXR + ee), S(sTMP), t_a)
    NQ = 12
    vQF = vS
    vXF = vKF + 16
    vWQB = vS + 48
    vXRB = vS + 52
    for db in range(4):
        e.valu("v_add_u32", V(vWQB + db), LDS_V + 32768, V(vWQA + db))
        e.valu("v_add_u32", V(vXRB + db), LDS_V, V(vXR + db))

    def xread(tau):
        base = XWB[tau][1] - 16384
        for ee in range(4):
            addr, off = (V(vXR + ee), base) if base < 65536 else (V(vXRB + ee), base - LDS_V)
            e.ds_read("ds_read_b128", V(vXF + 16 * (tau & 1) + 4 * ee, 4), addr, off)

    def qrd(tau, i):
        ee, db = divmod(i, 4)
        fr = vQF + 4 * ((16 * tau + i) % NQ)
        base = XWB[tau][0]
        addr, off = (V(vWQA + db), base) if base < 65536 else (V(vWQB + db), base - (LDS_V + 32768))
        for u in range(2):
            e.ds_read("ds_read_b64_tr_b16", V(fr + 2 * u, 2), addr, off + (16 * ee + 4 * u) * 256)

    def qmf(tau, i):
        ee, db = divmod(i, 4)
        fr = vQF + 4 * ((16 * tau + i) % NQ)
        first = (tau == 0 and ee == 0)
        e.mfma(V(vO + 16 * db, 16), V(fr, 4), V(vXF + 16 * (tau & 1) + 4 * ee, 4),
               0 if first else V(vO + 16 * db, 16))

    e.wait_vm(("xw", 0))
    e.barrier()
    stamp(46)
    xread(0)
    for i in range(8):
        qrd(0, i)
    KVS = {1: [("K", 0), ("K", 1)], 2: [("V", 0), ("K", 2)], 6: [("V", 1), ("K", 3)], 7: [("V", 2)]}
    XWS = {0: [3, 4], 3: [5], 4: [6], 5: [7]}
    if o.pro == 1:
        KVS = {4: [("K", 0), ("K", 1)], 5: [("V", 0), ("K", 2)], 6: [("V", 1), ("K", 3)], 7: [("V", 2)]}
        XWS = {0: [2, 3], 1: [4, 5], 2: [6], 3: [7]}
    late_kv = []
    if o.pro == 2:
        KVS = {4: [("K", 0), ("K", 1)], 5: [("V", 0)], 6: [("K", 2)]}
        XWS = {0: [2, 3], 1: [4, 5], 2: [6], 3: [7]}
        late_kv = [("V", 1), ("K", 3), ("V", 2)]
    for tau in range(8):
        dq = []
        for t in XWS.get(tau, []):
            dq += xw_ops(t)
        for kind, t in KVS.get(tau, []):
            dq += kv_init_ops(kind, t)
        pos = [int((k + 0.5) * 12 / max(len(dq), 1)) for k in range(len(dq))]
        for i in range(12):
            qmf(tau, i)
            if i < 8:
                qrd(tau, i + 8)
            while dq and pos[0] <= i:
                pos.pop(0)
                dq.pop(0)()
        assert not dq
        if tau == (5 if o.pro == 0 else 3):
            raw("s_cmp_lg_u32 s%d, 0" % sW)
            raw("s_cbranch_scc1 L_noclaim")
            raw("v_mov_b32 v%d, 0" % vT)
            raw("s_mov_b64 exec, 1")
            raw("buffer_atomic_add %s, v%d, s[%d:%d], 0 offen sc1" % (vSL[0], vT, sDBG, sDBG + 3))
            raw("buffer_atomic_add %s, %s, s[%d:%d], 0 offen sc0 sc1" % (vSL[0], vSA[0], sDBG, sDBG + 3))
            raw("s_mov_b64 exec, -1")
            e.label("L_noclaim")
            claim_mark = e.vm_total
        if tau < 7:
            e.wait_vm(("xw", tau + 1))
            e.lgkm0()
            e.barrier()
            if o.stamp > 1:
                stamp(53 + tau)
            xread(tau + 1)
            for i in range(8):
                qrd(tau + 1, i)
        for i in range(12, 16):
            qmf(tau, i)
    stamp(2)
    raw("s_mov_b32 s%d, 0x%x" % (sTMP, f32bits(SCALE)))
    for db in range(4):
        for r in range(0, 16, 2):
            a, b = V(vO + 16 * db + r), V(vO + 16 * db + r + 1)
            e.valu("v_mul_f32", a, S(sTMP), a)
            e.valu("v_mul_f32", b, S(sTMP), b)
            e.valu("v_cvt_pk_bf16_f32", V(vQ + 8 * db + r // 2), a, b)
    raw("s_cmp_lg_u32 s%d, 0" % sW)
    raw("s_cbranch_scc1 L_nocount")
    raw("s_mov_b32 s%d, 0" % sTRY)
    raw("s_waitcnt vmcnt(%d)" % (e.vm_total - claim_mark))
    if not o.dyn:
        raw("s_branch L_static")
    e.label("L_claim")
    e.ins("v_readfirstlane_b32 s%d, %s" % (sTMP, vSL[0]), "rfl", dst=["s%d" % sTMP], src=vSL[1])
    raw("s_cmp_lt_u32 s%d, 32" % sTMP)
    raw("s_cbranch_scc1 L_claimed")
    raw("s_add_u32 s%d, s%d, 1" % (sTRY, sTRY))
    raw("s_cmp_lt_u32 s%d, 8" % sTRY)
    raw("s_cbranch_scc1 L_retry")
    e.label("L_static")
    raw("s_and_b32 s%d, s2, 7" % sXCC)
    raw("s_lshr_b32 s%d, s2, 3" % sTMP)
    raw("s_branch L_claimed")
    e.label("L_retry")
    raw("s_add_u32 s%d, s%d, 1" % (sXCC, sXCC))
    raw("s_and_b32 s%d, s%d, 7" % (sXCC, sXCC))
    raw("s_lshl_b32 s%d, s%d, 2" % (sTMP, sXCC))
    raw("s_add_u32 s%d, s%d, 64" % (sTMP, sTMP))
    raw("v_mov_b32 %s, s%d" % (vSA[0], sTMP))
    raw("v_mov_b32 %s, 1" % vSL[0])
    raw("s_mov_b64 exec, 1")
    raw("buffer_atomic_add %s, %s, s[%d:%d], 0 offen sc0 sc1" % (vSL[0], vSA[0], sDBG, sDBG + 3))
    raw("s_mov_b64 exec, -1")
    raw("s_waitcnt vmcnt(0)")
    raw("s_branch L_claim")
    e.label("L_claimed")
    raw("s_lshl_b32 s%d, s%d, 5" % (sXCC, sXCC))
    raw("s_add_u32 s%d, s%d, s%d" % (sTMP, sTMP, sXCC))
    raw("v_mov_b32 %s, s%d" % (vSL[0], sTMP))
    raw("v_mov_b32 %s, 0x%x" % (vSA[0], LDS_V + 49152))
    raw("ds_write_b32 %s, %s" % (vSA[0], vSL[0]))
    raw("s_waitcnt lgkmcnt(0)")
    e.label("L_nocount")
    vFZ2 = 28
    e.valu("v_mov_b32", V(vFZ2), V(vFZ))

    vFA, vF = V(29), V(30)
    def kread(slot, i):
        kb, s = divmod(i, 8)
        G.e.ds_read("ds_read_b128", V(vKF + 4 * (i % NKF), 4), V(vKA + s), LDS_K + slot * 16384 + kb * 8192)

    def vread(slot, j):
        ks, db = divmod(j, 4)
        fr = vVF + 4 * (j % NVF)
        for u in range(2):
            G.e.ds_read("ds_read_b64_tr_b16", V(fr + 2 * u, 2), V(vVA + db), slot * 16384 + (16 * ks + 8 * u) * 256)

    def qk_mfma(sb, i, cinit):
        kb, s = divmod(i, 8)
        d = V(sb + 16 * kb, 16)
        c = d if s > 0 else cinit
        G.e.mfma(d, V(vKF + 4 * (i % NKF), 4), V(vQ + 4 * s, 4), c)

    def pv_mfma(sb, j):
        ks, db = divmod(j, 4)
        p = V(sb + 8 * ks, 4)
        d = V(vO + 16 * db, 16)
        G.e.mfma(d, V(vVF + 4 * (j % NVF), 4), p, d)

    def softmax_ops(sb, ks):
        b = sb + 8 * ks
        ex = lambda i: (2, lambda: G.e.trans("v_exp_f32", V(b + i), V(b + i)))
        ad = lambda i: (1, lambda: G.e.valu("v_add_f32", V(vL0 + (i & 1)), V(vL0 + (i & 1)), V(b + i)))
        cv = lambda k: (1, lambda: G.e.valu("v_cvt_pk_bf16_f32", V(b + k), V(b + 2 * k), V(b + 2 * k + 1)))
        return [ex(0), ex(1), ex(2), ex(3), ad(0), ad(1), ex(4), ad(2), ex(5), ad(3), cv(0), ex(6), ad(4),
                ex(7), ad(5), cv(1), ad(6), ad(7), cv(2), cv(3)]

    vM = V(vT)

    def max_ops(sb, half):
        ops = []
        b = sb + 16 * half
        if half == 0:
            ops.append((1, lambda: G.e.valu("v_max3_f32", vM, V(b), V(b + 1), V(b + 2))))
            for k in range(3, 15, 2):
                ops.append((1, lambda k=k: G.e.valu("v_max3_f32", vM, vM, V(b + k), V(b + k + 1))))
            ops.append((1, lambda: G.e.valu("v_max_f32", vM, vM, V(b + 15))))
        else:
            for k in range(0, 16, 2):
                ops.append((1, lambda k=k: G.e.valu("v_max3_f32", vM, vM, V(b + k), V(b + k + 1))))
        return ops

    def full_max():
        e = G.e
        t = V(vT + 1)
        e.valu("v_mov_b32", t, vM)
        e.ins("v_permlane32_swap_b32 %s, %s" % (vM[0], t[0]), "perm", dst=vM[1] + t[1], src=vM[1] + t[1])
        e.valu("v_max_f32", vM, vM, t)

    rare = []

    def gen_rare(lbl, ret, sb):
        e = G.e
        e.label(lbl)
        e.nop(16)
        full_max()
        e.valu("v_max_f32", vM, 0, vM)
        f = V(vT + 2)
        e.ins("v_exp_f32 %s, -%s" % (f[0], vM[0]), "trans", dst=f[1], src=vM[1])
        for i in range(32):
            e.valu("v_sub_f32", V(sb + i), V(sb + i), vM)
        for i in range(16):
            e.valu("v_sub_f32", V(vC + i), V(vC + i), vM)
        for i in range(64):
            e.valu("v_mul_f32", V(vO + i), V(vO + i), f)
        e.valu("v_mul_f32", V(vL0), V(vL0), f)
        e.valu("v_mul_f32", V(vL1), V(vL1), f)
        e.nop(4)
        e.raw("s_branch %s" % ret)

    def wo_ops(m0base_sgpr, m0_imm, soff_sgpr, row0, n, tag):
        def op(i):
            def f():
                e = G.e
                e.vmtag = tag
                e.salu("s_add_u32", "m0", S(m0base_sgpr), m0_imm + i * 1024)
                e.raw("s_add_u32 s%d, s%d, 0x%x" % (sTMP, soff_sgpr, (row0 + 8 * i) * 1024))
                e.buf_dma(V(vWD), srdWO, S(sTMP), 0, woflag)
            return f
        return [op(i) for i in range(n)]

    def wo_step_reads(step):
        e = G.e
        j, half = step >> 1, step & 1
        for sg in range(4):
            for nb in range(2):
                for u in range(2):
                    e.ds_read("ds_read_b64_tr_b16", A(64 * j + 8 * (4 * half + sg) + 4 * nb + 2 * u, 2),
                              V(vRA + nb), (16 * sg + 8 * u) * 128)

    QREG = [LDS_K + 0, LDS_K + 16384, LDS_V + 0, LDS_K + 32768, LDS_V + 16384, LDS_K + 49152, LDS_V + 32768, None]

    def quarter_ops(q, jbase, tag):
        j = jbase + (q >> 2)
        if QREG[q] is None:
            return wo_ops(sM0WW, 0, sHO + j, 32 * (q & 3), 4, tag)
        return wo_ops(sM0W, QREG[q], sHO + j, 32 * (q & 3), 4, tag)

    def quarter_dma(q, jbase, tag):
        for f in quarter_ops(q, jbase, tag):
            f()

    def tile(t, mode, uid):
        e = G.e
        t4 = t % 4
        do_k = t + 4 <= 31
        do_v = t + 3 <= 31
        do_qk = t + 1 <= 31
        cur = vS + 32 * (t4 & 1)
        nxt = vS + 32 * ((t4 + 1) & 1)
        kslot = (t4 + 1) % 4
        vslot = t4 % 4
        vq = []
        marks = {}
        for ks in range(4):
            vq += softmax_ops(cur, ks)
            marks[ks] = len(vq)
        state = {"i": 0}

        def run_upto(n):
            while state["i"] < n:
                vq[state["i"]][1]()
                state["i"] += 1

        def run_budget(budget, lst, st):
            while st["i"] < len(lst) and budget > 0:
                c, fn = lst[st["i"]]
                fn()
                st["i"] += 1
                budget -= c

        if t == 31:
            run_upto(len(vq))
        if o.stamp:
            e.raw("s_add_u32 s59, s59, 1")
        tags = [("K", t + 1), ("V", t)]
        wr = (t4 == 0 and t > 0) if o.wlast else (t4 == 3)
        wstep = t // 4 - 1 if o.wlast else t // 4
        if wr:
            tags.append(("W", wstep))
        if t == 31 and o.wlast:
            tags.append(("W", 7))
        if t == 31:
            tags.append("cnt")
        e.wait_vm(*tags)
        e.barrier()
        if not o.notile:
            stamp(S(59))
        if o.wlast and t4 == 0:
            if mode == "loop":
                for k in range(6):
                    e.raw("s_cmp_eq_u32 s%d, %d" % (sCNT, k + 1))
                    e.raw("s_cbranch_scc1 L_wrd_%d" % k)
                e.label("L_wrd_ret")
            else:
                wo_step_reads(6)
                e.ldsq = []
        if t4 == 3:
            if mode == "loop":
                if not o.wlast:
                    for k in range(7):
                        e.raw("s_cmp_eq_u32 s%d, %d" % (sCNT, k))
                        e.raw("s_cbranch_scc1 L_wrd_%d" % k)
                    e.label("L_wrd_ret")
            else:
                wo_step_reads(7)
                e.ldsq = []
                e.raw("s_mov_b32 s%d, 0x20000" % sTO)
                e.label("L_cnt")
                e.ins("v_readfirstlane_b32 s%d, v%d" % (sTMP, vCK), "rfl", dst=["s%d" % sTMP], src=["v%d" % vCK])
                e.raw("s_cmp_ge_u32 s%d, 256" % sTMP)
                e.raw("s_cbranch_scc1 L_cnt_ok")
                e.raw("s_sleep 2")
                e.valu("v_mov_b32", V(vCK), 0)
                e.raw("buffer_load_dword v%d, v%d, s[%d:%d], 0 offen sc1" % (vCK, vCK, sDBG, sDBG + 3))
                e.raw("s_waitcnt vmcnt(0)")
                e.raw("s_sub_u32 s%d, s%d, 1" % (sTO, sTO))
                e.raw("s_cmp_lg_u32 s%d, 0" % sTO)
                e.raw("s_cbranch_scc1 L_cnt")
                e.raw("s_branch L_done")
                e.label("L_cnt_ok")
                e.vmtag = "poll"
                e.buf_load("buffer_load_dword", vF, vFA, srdFL, 0, 0, "sc1")
        if do_qk:
            for i in range(NKF):
                kread(kslot, i)
        dq = []
        if t4 == 0:
            if mode == "loop":
                e.raw("s_lshr_b32 s%d, s%d, 1" % (sTMP2, sCNT))
                e.raw("s_add_u32 s%d, s%d, s%d" % (sTMP2, sTMP2, sROT))
                e.raw("s_and_b32 s%d, s%d, 7" % (sTMP2, sTMP2))
                e.raw("s_lshl_b32 s%d, s%d, 1" % (sTMP2, sTMP2))
                e.raw("s_and_b32 s%d, s%d, 1" % (sTMP, sCNT))
                e.raw("s_add_u32 s%d, s%d, s%d" % (sTMP2, sTMP2, sTMP))
                e.raw("s_lshl_b32 s%d, s%d, 16" % (sTMP2, sTMP2))
                dq += wo_ops(sM0WW, 0, sTMP2, 0, 8, ("W", t // 4))
            else:
                dq += wo_ops(sM0WW, 0, sHO + 3, 64, 8, ("W", 7))
        kq = []
        if do_k:
            kq += kv_ops("K", t4 % 4, sKOFF, t + 4, post="s_add_u32 s%d, s%d, 0x4000" % (sKOFF, sKOFF))
        if do_v:
            kq += kv_ops("V", (t4 + 3) % 4, sVOFF, t + 3, post="s_add_u32 s%d, s%d, 0x4000" % (sVOFF, sVOFF))
        if o.wlast:
            dq = kq + dq
        else:
            dq = dq + kq
        if mode == "tail":
            qs = {28: [0], 29: [1, 2], 30: [3, 4], 31: [5, 6, 7]}[t]
            for q in qs:
                dq += quarter_ops(q, 4, "Q45")
            if t == 30:
                e.vmtag = "cnt"
                e.valu("v_mov_b32", V(vCK), 0)
                e.buf_load("buffer_load_dword", V(vCK), V(vCK), srdDBG, 0, 0, "sc1")

        nkv = len(kq) if o.wlast else 0
        gcount = {"g": 0}

        def dma_next(force=False):
            g = gcount["g"]
            gcount["g"] += 1
            if not dq:
                return
            issued_kv = len(kq) - min(len(kq), max(0, nkv - (total_dq - len(dq))))
            in_kv = (total_dq - len(dq)) < nkv
            if force or (in_kv and g % o.kstep == 0) or (not in_kv and g % o.dstep == 0):
                dq.pop(0)()
        total_dq = len(dq)
        mq0 = max_ops(nxt, 0) if do_qk else []
        mq1 = max_ops(nxt, 1) if do_qk else []
        ms0, ms1 = {"i": 0}, {"i": 0}
        if do_qk:
            run_budget(8, vq, state)
            for g in range(16):
                qk_mfma(nxt, g, V(vC, 16))
                if g + NKF < 16:
                    kread(kslot, g + NKF)
                if 6 <= g < 6 + NVF:
                    vread(vslot, g - 6)
                dma_next()
                run_budget(4, vq, state)
                if g >= 11:
                    run_budget(2, mq0, ms0)
        else:
            for j in range(NVF):
                vread(vslot, j)
        for j in range(16):
            ks = j // 4
            run_upto(marks[ks])
            pv_mfma(cur, j)
            if j + NVF < 16:
                vread(vslot, j + NVF)
            dma_next(force=not do_qk)
            run_budget(4, vq, state)
            if do_qk:
                run_budget(99, mq0, ms0)
                if j >= 10:
                    run_budget(2, mq1, ms1)
        assert state["i"] == len(vq)
        assert not dq
        if do_qk:
            run_budget(99, mq1, ms1)
            e.ins("v_cmp_lt_f32 vcc, 0x%x, %s" % (f32bits(THRESH), vM[0]), "valu", dst=["vcc"], src=vM[1])
            lbl, ret = "L_rare_%s" % uid, "L_ret_%s" % uid
            e.raw("s_cbranch_vccnz %s" % lbl)
            e.label(ret)
            rare.append((lbl, ret, nxt))
        assert not e.ldsq

    e.wait_vm(("K", 0))
    e.barrier()
    e.valu("v_mov_b32", V(vCK), LDS_V + 49152)
    e.ds_read("ds_read_b32", V(vCK), V(vCK), 0)
    for i in range(NKF):
        kread(0, i)
    zi = 0
    lq = []
    for kind, t in late_kv:
        lq += kv_init_ops(kind, t)
    for g in range(16):
        qk_mfma(vS, g, 0)
        if g + NKF < 16:
            kread(0, g + NKF)
        if lq:
            lq.pop(0)()
        for _ in range(4):
            e.valu("v_mov_b32", V(vO + zi), 0)
            zi += 1
    e.valu("v_mov_b32", V(vL0), 0)
    e.valu("v_mov_b32", V(vL1), 0)
    e.ins("v_readfirstlane_b32 s%d, v%d" % (sTMP2, vCK), "rfl", dst=["s%d" % sTMP2], src=["v%d" % vCK])
    raw("s_bfe_u32 s%d, s%d, 0x20005" % (sPQ, sTMP2))
    raw("s_lshl_b32 s%d, s%d, 3" % (sPQ, sPQ))
    raw("s_and_b32 s%d, s%d, 7" % (sTMP, sTMP2))
    raw("s_add_u32 s%d, s%d, s%d" % (sPQ, sPQ, sTMP))
    raw("s_bfe_u32 s%d, s%d, 0x10007" % (sNT, sTMP2))
    raw("s_lshl_b32 s%d, s%d, 2" % (sNT, sNT))
    raw("s_bfe_u32 s%d, s%d, 0x20003" % (sTMP, sTMP2))
    raw("s_add_u32 s%d, s%d, s%d" % (sNT, sNT, sTMP))
    raw("s_lshl_b32 s%d, s%d, 1" % (sROT, sTMP))
    for j in range(8):
        raw("s_add_u32 s%d, s%d, %d" % (sTMP, sROT, j))
        raw("s_and_b32 s%d, s%d, 7" % (sTMP, sTMP))
        raw("s_lshl_b32 s%d, s%d, 17" % (sHO + j, sTMP))
    raw("s_lshl_b32 s%d, s%d, 20" % (sTMP, sW))
    raw("s_lshl_b32 s%d, s%d, 7" % (sTMP2, sNT))
    raw("s_add_u32 s%d, s%d, s%d" % (sTMP, sTMP, sTMP2))
    raw("s_add_u32 s%d, s12, s%d" % (sWO, sTMP))
    raw("s_addc_u32 s%d, s13, 0" % (sWO + 1))
    raw("s_sub_u32 s%d, 0x100000, s%d" % (sWO + 2, sTMP2))
    raw("s_mov_b32 s%d, 0x20000" % (sWO + 3))
    raw("s_lshl_b32 s%d, s%d, 15" % (sTMP, sPQ))
    raw("s_add_u32 s%d, s%d, s%d" % (sTMP, sTMP, sTMP2))
    raw("s_add_u32 s%d, s14, s%d" % (sOUT, sTMP))
    raw("s_addc_u32 s%d, s15, 0" % (sOUT + 1))
    raw("s_sub_u32 s%d, 0x8000, s%d" % (sOUT + 2, sTMP2))
    raw("s_mov_b32 s%d, 0x20000" % (sOUT + 3))
    raw("s_lshl_b32 s%d, s%d, 18" % (sTMP, sPQ))
    raw("s_lshl_b32 s%d, s%d, 16" % (sTMP2, sW))
    raw("s_add_u32 s%d, s%d, s%d" % (sTMP, sTMP, sTMP2))
    raw("s_add_u32 s%d, s18, s%d" % (sOI, sTMP))
    raw("s_addc_u32 s%d, s19, 0" % (sOI + 1))
    raw("s_mov_b32 s%d, 0x10000" % (sOI + 2))
    raw("s_mov_b32 s%d, 0x20000" % (sOI + 3))

    e.valu("v_lshrrev_b32", vFA, 4, V(vLN))
    e.valu("v_add_u32", vFA, S(sROT), vFA)
    e.valu("v_and_b32", vFA, 7, vFA)
    raw("s_lshl_b32 s%d, s%d, 5" % (sTMP, sPQ))
    raw("s_lshl_b32 s%d, s%d, 3" % (sTMP2, sW))
    raw("s_add_u32 s%d, s%d, s%d" % (sTMP, sTMP, sTMP2))
    e.valu("v_add_u32", vFA, S(sTMP), vFA)
    e.valu("v_lshlrev_b32", vFA, 2, vFA)


    for c, fn in max_ops(vS, 0) + max_ops(vS, 1):
        fn()
    full_max()
    for i in range(32):
        e.valu("v_sub_f32", V(vS + i), V(vS + i), vM)
    for i in range(16):
        e.valu("v_sub_f32", V(vC + i), 0, vM)

    raw("s_mov_b32 s%d, 0" % sCNT)
    stamp(3)
    if o.stamp:
        raw("s_memtime s[60:61]")
        raw("s_waitcnt lgkmcnt(0)")
        raw("v_writelane_b32 v31, s60, 6")
        raw("s_mov_b32 s59, 7")

    def body(p):
        G.e.label("L_loop")
        for t4 in range(4):
            tile(4 * p + t4, "loop", "m%d" % t4)
        G.e.raw("s_add_u32 s%d, s%d, 1" % (sCNT, sCNT))
        G.e.raw("s_cmp_lt_u32 s%d, 7" % sCNT)
        G.e.raw("s_cbranch_scc1 L_loop")

    real = G.e
    sim = copy.deepcopy(real)
    G.e = sim
    logs = []
    backs = []
    for p in range(7):
        sim.vm_log = []
        body(p)
        logs.append(list(sim.vm_log))
        backs.append(sim.snapshot())
    over = [min(l[i] for l in logs) for i in range(len(logs[0]))]
    sys.stderr.write("loop vmcnt sites: %s\n" % logs)
    G.e = real
    e = real
    rare.clear()
    e.merge(backs[0])
    e.merge(backs[-1])
    e.vm_log = []
    e.vm_over = over
    body(0)
    e.vm_over = None
    e.vmq = list(sim.vmq)
    for t in range(28, 32):
        tile(t, "tail", "t%d" % t)
    stamp(4)
    if o.stamp:
        raw("s_memtime s[60:61]")
        raw("s_waitcnt lgkmcnt(0)")
        raw("v_writelane_b32 v31, s60, 7")

    l = V(vL0)
    t = V(vT + 1)
    e.valu("v_add_f32", l, l, V(vL1))
    e.valu("v_mov_b32", t, l)
    e.ins("v_permlane32_swap_b32 %s, %s" % (l[0], t[0]), "perm", dst=l[1] + t[1], src=l[1] + t[1])
    e.valu("v_add_f32", l, l, t)
    e.trans("v_rcp_f32", l, l)
    vo2 = V(vT + 2)
    e.valu("v_add_u32", vo2, 4096, V(vLN))
    e.vmtag = "Ost"
    for sg in range(8):
        base = vO + 8 * sg
        for k in range(8):
            e.valu("v_mul_f32", V(base + k), V(base + k), l)
        fr = vQ + 4 * sg
        for k in range(4):
            e.valu("v_cvt_pk_bf16_f32", V(fr + k), V(base + 2 * k), V(base + 2 * k + 1))
        e.buf_store("buffer_store_dwordx4", V(fr, 4), V(vLN) if sg < 4 else vo2, srdWS, 0, (sg & 3) * 1024, "sc1")
    vQA = 1
    raw("s_sub_u32 s%d, s%d, s%d" % (sTMP, sM0W, sM0WW))
    raw("s_add_u32 s%d, s%d, 0x%x" % (sTMP2, sTMP, LDS_V))
    for nb in range(2):
        e.valu("v_add_u32", V(vQA + nb), S(sTMP), V(vRA + nb))
        e.valu("v_add_u32", V(vQA + 2 + nb), S(sTMP2), V(vRA + nb))
    def quarter_reads(q, dstfn):
        for s2 in range(2):
            for nb in range(2):
                for u in range(2):
                    sg = 2 * (q & 3) + s2
                    off = (16 * s2 + 8 * u) * 128
                    if QREG[q] is None:
                        addr = V(vRA + nb)
                    elif QREG[q] < LDS_V:
                        addr, off = V(vQA + nb), off + QREG[q]
                    else:
                        addr, off = V(vQA + 2 + nb), off + QREG[q] - LDS_V
                    e.ds_read("ds_read_b64_tr_b16", dstfn(q >> 2, sg, nb, u), addr, off)

    vW45 = 128
    vAcc = vQ
    vOB = vO

    def need_flag(j, sfx=""):
        raw("s_bitcmp1_b32 s%d, %d" % (sMASK, j))
        raw("s_cbranch_scc1 L_ok_%d" % j)
        e.label("L_spin_%d" % j)
        raw("buffer_load_dword %s, %s, s[%d:%d], 0 offen sc1" % (vF[0], vFA[0], sFL, sFL + 3))
        raw("s_waitcnt vmcnt(0)")
        raw("v_cmp_ne_u32 vcc, 0, %s" % vF[0])
        raw("s_nop 1")
        raw("s_mov_b32 s%d, vcc_lo" % sMASK)
        raw("s_bitcmp1_b32 s%d, %d" % (sMASK, j))
        raw("s_cbranch_scc1 L_ok_%d" % j)
        raw("s_sleep 1")
        raw("s_sub_u32 s%d, s%d, 1" % (sTO, sTO))
        raw("s_cmp_lg_u32 s%d, 0" % sTO)
        raw("s_cbranch_scc1 L_spin_%d" % j)
        raw("s_branch L_done")
        e.label("L_ok_%d" % j)

    def o_loads(j, check=True):
        if check:
            need_flag(j)
        e.vmtag = ("O", j)
        raw("s_lshr_b32 s%d, s%d, 4" % (sR7, sHO + j))
        raw("s_add_u32 s%d, s%d, 0x1000" % (sR19, sR7))
        for sg in range(8):
            e.buf_load("buffer_load_dwordx4", V(vOB + 32 * (j & 1) + 4 * sg, 4), V(vLN), srdOI,
                       S(sR7 if sg < 4 else sR19), (sg & 3) * 1024, "sc1")

    def q45_reads():
        for q in range(8):
            quarter_reads(q, lambda hh, sg, nb, u: V(vW45 + 64 * hh + 8 * sg + 4 * nb + 2 * u, 2))

    def flag_store():
        e.wait_vm("Ost")
        e.valu("v_mov_b32", V(vT), 1)
        raw("s_mov_b64 exec, 1")
        e.vmtag = "flag"
        e.buf_store("buffer_store_dword", V(vT), V(vFZ2), srdFL, 0, 0, "sc1")
        raw("s_mov_b64 exec, -1")

    def wfrag(j, sg, nb):
        if j < 4:
            return A(64 * j + 8 * sg + 4 * nb, 4)
        if j < 6:
            return V(vW45 + 64 * (j - 4) + 8 * sg + 4 * nb, 4)
        return A(64 * (j - 6) + 8 * sg + 4 * nb, 4)

    e.wait_vm("Q45", "poll")
    raw("v_cmp_ne_u32 vcc, 0, %s" % vF[0])
    raw("s_nop 1")
    raw("s_mov_b32 s%d, vcc_lo" % sMASK)
    raw("s_and_b32 s%d, s%d, 3" % (sTMP, sMASK))
    raw("s_cmp_eq_u32 s%d, 3" % sTMP)
    raw("s_cbranch_scc0 L_slow")
    fork = copy.deepcopy(e)
    o_loads(0, False)
    o_loads(1, False)
    q45_reads()
    flag_store()
    e.lgkm0()
    raw("s_mov_b32 s%d, 0" % sTRY)
    raw("s_branch L_join")
    fast_lines = e.lines
    fork.lines = fast_lines
    G.e = e = fork
    e.label("L_slow")
    q45_reads()
    flag_store()
    e.lgkm0()
    if o.early67:
        vq_save, vt_save = list(e.vmq), e.vm_total
        for q in range(8):
            quarter_dma(q, 6, "Q67e")
        e.vmq, e.vm_total = vq_save, vt_save
        raw("s_mov_b32 s%d, 1" % sTRY)
    o_loads(0)
    o_loads(1)
    e.label("L_join")
    e.nop(2)
    stamp(50)
    dq = []
    for q in range(8):
        dq += quarter_ops(q, 6, "Q67")
    for j in range(8):
        e.wait_vm(("O", j))
        if j == 0:
            stamp(51)
        for sg in range(8):
            for nb in range(2):
                d = V(vAcc + 16 * nb, 16)
                e.mfma(d, wfrag(j, sg, nb), V(vOB + 32 * (j & 1) + 4 * sg, 4), 0 if (j == 0 and sg == 0) else d)
                if dq and (nb == 0 or j > 0):
                    if o.early67:
                        lbl = "L_sk67_%d" % len(dq)
                        raw("s_cmp_eq_u32 s%d, 1" % sTRY)
                        raw("s_cbranch_scc1 %s" % lbl)
                        vq_save, vt_save = list(e.vmq), e.vm_total
                        dq.pop(0)()
                        e.vmq, e.vm_total = vq_save, vt_save
                        q67_mark = e.vm_total
                        e.label(lbl)
                    else:
                        dq.pop(0)()
        if j + 2 < 8:
            o_loads(j + 2)
        if j == 3:
            assert not dq
            if o.early67:
                raw("s_waitcnt vmcnt(%d)" % (e.vm_total - q67_mark))
            else:
                e.wait_vm("Q67")
            for q in range(8):
                quarter_reads(q, lambda hh, sg, nb, u: A(64 * hh + 8 * sg + 4 * nb + 2 * u, 2))
    stamp(52)
    wa = V(7)
    e.valu("v_add_u32", wa, S(sM0WW), V(vLN))
    for q in range(8):
        e.ds_write("ds_write_b128", wa, V(vAcc + 4 * q, 4), q * 1024)
    e.lgkm0()
    e.barrier()
    raw("s_lshl_b32 s%d, s%d, 11" % (sTMP, sW))
    raw("s_add_u32 s%d, s%d, 0x%x" % (sTMP, sTMP, LDS_W))
    ra = V(8)
    e.valu("v_add_u32", ra, S(sTMP), V(vLN))
    for k in range(2):
        for ww in range(4):
            e.ds_read("ds_read_b128", V(64 + 16 * k + 4 * ww, 4), ra, ww * 8192 + k * 1024)
    oa = V(9)
    e.valu("v_bfe_u32", oa, V(vLN), 4, 5)
    e.valu("v_lshlrev_b32", oa, 10, oa)
    e.valu("v_lshrrev_b32", V(10), 9, V(vLN))
    e.valu("v_lshl_add_u32", oa, V(10), 3, oa)
    raw("s_lshl_b32 s%d, s%d, 5" % (sTMP, sW))
    e.valu("v_add_u32", oa, S(sTMP), oa)
    for k in range(2):
        b = 64 + 16 * k
        for c in range(4):
            e.valu("v_add_f32", V(b + c), V(b + c), V(b + 4 + c))
            e.valu("v_add_f32", V(b + 8 + c), V(b + 8 + c), V(b + 12 + c))
            e.valu("v_add_f32", V(b + c), V(b + c), V(b + 8 + c))
        e.valu("v_cvt_pk_bf16_f32", V(12 + 2 * k), V(b), V(b + 1))
        e.valu("v_cvt_pk_bf16_f32", V(13 + 2 * k), V(b + 2), V(b + 3))
        e.buf_store("buffer_store_dwordx2", V(12 + 2 * k, 2), oa, srdOUT, 0, 16 * k)
    if o.stamp:
        e.vmcnt(0)
        stamp(5)
        if o.sdbg:
            for i, idx in enumerate([0, 1, 46, 2, 3, 16, 24, 32, 4, 50, 51, 52, 5]):
                raw("v_readlane_b32 s47, v31, %d" % idx)
                raw("s_nop 3")
                raw("v_writelane_b32 v29, s47, %d" % (1 + i))
            raw("v_readlane_b32 s47, v31, 0")
            raw("s_nop 3")
            raw("s_not_b32 s47, s47")
            raw("v_writelane_b32 v29, s47, 15")
            raw("v_readlane_b32 s47, v31, 4")
            raw("s_nop 3")
            raw("s_not_b32 s47, s47")
            raw("v_writelane_b32 v29, s47, 14")
            e.valu("v_lshrrev_b32", V(30), 2, V(vLN))
            raw("s_mov_b64 exec, 0xfffe")
            raw("buffer_atomic_umax v29, v30, s[%d:%d], 0 offen sc1" % (sDBG, sDBG + 3))
            raw("s_mov_b64 exec, -1")
            raw("s_branch L_done")
        raw("s_lshl_b32 s47, s2, 2")
        raw("s_add_u32 s47, s47, s%d" % sW)
        raw("s_lshl_b32 s47, s47, 8")
        raw("s_add_u32 s47, s47, 0x%x" % STAMP_OFF)
        raw("s_add_u32 s92, s18, s47")
        raw("s_addc_u32 s93, s19, 0")
        raw("s_mov_b32 s94, 256")
        raw("s_mov_b32 s95, 0x20000")
        e.valu("v_lshrrev_b32", V(30), 2, V(vLN))
        e.buf_store("buffer_store_dword", V(31), V(30), S(92, 4), 0, 0)
    e.label("L_done")
    raw("s_endpgm")
    for lbl, ret, sb in rare:
        gen_rare(lbl, ret, sb)
    for k in range(6 if o.wlast else 7):
        e.label("L_wrd_%d" % k)
        wo_step_reads(k)
        e.ldsq = []
        raw("s_branch L_wrd_ret")
    return e


def build(o):
    a = gen(o)
    out = HEADER
    out += "; @launch grid=(256,1,1) block=(256,1,1) lds=163840\n"
    out += '.amdgcn_target "amdgcn-amd-amdhsa--gfx950"\n.text\n'
    out += ".globl %s\n.p2align 8\n.type %s,@function\n%s:\n" % (NAME, NAME, NAME)
    out += a.text()
    out += '.section .rodata,"a"\n'
    out += """.p2align 6
.amdhsa_kernel %s
  .amdhsa_next_free_vgpr 512
  .amdhsa_next_free_sgpr 100
  .amdhsa_accum_offset 256
  .amdhsa_group_segment_fixed_size 0
  .amdhsa_kernarg_size 64
  .amdhsa_user_sgpr_count 2
  .amdhsa_user_sgpr_kernarg_segment_ptr 1
  .amdhsa_system_sgpr_workgroup_id_x 1
.end_amdhsa_kernel
""" % NAME
    sys.stderr.write("%s nops=%d\n" % (a.count, a.nops))
    return out


if __name__ == "__main__":
    o = Opt()
    for arg in sys.argv[2:]:
        k, v = arg.split("=")
        setattr(o, k, v if k in ("kf", "vf", "wof") else int(v))
    open(sys.argv[1], "w").write(build(o))
```

```python
import sys
import struct
import math
import copy
from emit import Emit, V, A, S

NAME = "standalone__mha_block_cached__near_ridge_kernel"

HEADER = """; Kernarg layout for this problem (64 bytes, ptrs only, base s[0:1]):
;  4. every workgroup computes a 32 x 64 tile of out = O @ wo; wo was prefetched during the key loop.
"""


def f32bits(x):
    return struct.unpack("<I", struct.pack("<f", x))[0]


SCALE = (128 ** -0.5) * math.log2(math.e)
THRESH = 8.0

vKA = 1
vVA = 9
vKD = 13
vVD = 17
vL0, vL1 = 18, 19
vT = 20
vWD = 23
vRA = 24
vCK = 26
vLN = 27
vPF = 0
vPD = 30
vQ = 32
vO = 64
vS = 128
vC = 192
vKF = 208
vVF = 232
NKF = 6
NVF = 6

sK, sV, sX, sWQ, sWS, sWO, sOI, sOUT, sFL, sDBG = 20, 24, 28, 32, 36, 64, 68, 72, 76, 80
sB, sH, sW, sCNT, sKOFF, sVOFF, sM0W, sTMP, sTMP2 = 40, 41, 42, 43, 44, 45, 46, 47, 48
sRHO, sR19, sR7, sPQ, sNT, sROT, sMASK, sTO, sM0WW = 49, 50, 51, 52, 53, 54, 55, 56, 57
sHO = 84
sXCC, sTRY, sTOFF = 58, 96, 97

LDS_K = 0
LDS_V = 65536
LDS_W = 131072
FLAG_OFF = 0x1000000
STAMP_OFF = 0x4000000


class Opt:
    kf = "nt"
    vf = "nt"
    stamp = 0
    notile = 0
    wof = ""
    dstep = 2
    early67 = 1
    ovl = 1
    deep = 0
    pf = 0
    pff = ""
    pro = 2
    sdbg = 0
    stag = 0
    dyn = 1
    wlast = 1
    kstep = 1


class G:
    e = None


def gen(o):
    G.e = Emit()
    e = G.e
    kflag = o.kf.replace("+", " ")
    vflag = o.vf.replace("+", " ")
    woflag = o.wof.replace("+", " ")

    def raw(t):
        G.e.raw(t)

    def stamp(idx):
        if not o.stamp:
            return
        e = G.e
        assert not e.ldsq
        e.raw("s_memrealtime s[60:61]")
        e.raw("s_waitcnt lgkmcnt(0)")
        if isinstance(idx, int):
            e.raw("v_writelane_b32 v31, s60, %d" % idx)
        else:
            e.raw("s_mov_b32 m0, %s" % idx[0])
            e.raw("s_nop 4")
            e.raw("v_writelane_b32 v31, s60, m0")

    raw("s_cmp_ge_u32 s2, 256")
    raw("s_cbranch_scc1 L_done")
    raw("s_load_dwordx16 s[4:19], s[0:1], 0")
    if o.stamp:
        raw("s_memrealtime s[62:63]")
    e.valu("v_lshrrev_b32", V(vT), 6, V(0))
    e.ins("v_readfirstlane_b32 s%d, v%d" % (sW, vT), "rfl", dst=["s%d" % sW], src=["v%d" % vT])
    raw("s_and_b32 s%d, s2, 1" % sB)
    raw("s_lshl_b32 s%d, s%d, 2" % (sB, sB))
    raw("s_bfe_u32 s%d, s2, 0x20003" % sTMP)
    raw("s_add_u32 s%d, s%d, s%d" % (sB, sB, sTMP))
    raw("s_bfe_u32 s%d, s2, 0x20001" % sH)
    raw("s_lshl_b32 s%d, s%d, 3" % (sH, sH))
    raw("s_lshr_b32 s%d, s2, 5" % sTMP)
    raw("s_add_u32 s%d, s%d, s%d" % (sH, sH, sTMP))
    raw("s_lshl_b32 s%d, s%d, 1" % (sRHO, sB))
    raw("s_add_u32 s%d, s%d, s%d" % (sRHO, sRHO, sH))
    raw("s_mul_i32 s%d, s2, %d" % (sTOFF, o.stag))
    raw("s_lshr_b32 s%d, s2, 5" % sTMP)
    raw("s_add_u32 s%d, s%d, s%d" % (sTOFF, sTOFF, sTMP) if o.stag else "s_nop 0")
    raw("s_and_b32 s%d, s%d, 31" % (sTOFF, sTOFF))
    raw("s_lshl_b32 s%d, s%d, 14" % (sTOFF, sTOFF))
    tb = vKF
    lane = V(tb)
    t_i4, t_i15, t_hf, t_k31, t_a, t_b, t_r, t_cc, t_ds, t_w16, t_i3, t_p7 = (V(tb + 1 + i) for i in range(12))
    e.valu("v_and_b32", lane, 63, V(0))
    e.valu("v_lshrrev_b32", t_i4, 4, lane)
    e.valu("v_and_b32", t_i15, 15, lane)
    e.valu("v_lshrrev_b32", t_hf, 5, lane)
    e.valu("v_and_b32", t_k31, 31, lane)
    e.valu("v_lshrrev_b32", t_r, 2, t_i15)
    e.valu("v_and_b32", t_cc, 3, lane)
    e.valu("v_and_b32", t_ds, 1, t_i4)
    e.valu("v_lshrrev_b32", t_i3, 3, lane)
    e.valu("v_and_b32", t_p7, 7, lane)
    e.valu("v_lshlrev_b32", V(vLN), 4, lane)
    raw("s_lshl_b32 s%d, s%d, 4" % (sTMP, sW))
    e.valu("v_add_u32", t_w16, S(sTMP), t_i4)
    raw("s_lshl_b32 s%d, s%d, 12" % (sM0W, sW))
    raw("s_lshl_b32 s%d, s%d, 13" % (sM0WW, sW))
    raw("s_add_u32 s%d, s%d, 0x%x" % (sM0WW, sM0WW, LDS_W))
    vWQA = vC
    vWW = vC + 4
    vWQL = vC + 5
    vXL = vC + 6
    vXW = vC + 7
    vXR = vC + 9
    vFZ = vC + 13
    e.valu("v_lshlrev_b32", t_a, 2, t_i4)
    e.valu("v_xor_b32", t_a, t_a, t_i15)
    e.valu("v_lshlrev_b32", t_a, 4, t_a)
    e.valu("v_lshl_add_u32", V(vWQL), t_w16, 13, t_a)
    e.valu("v_lshl_add_u32", V(vVD), t_w16, 8, t_a)
    raw("s_lshl_b32 s%d, s%d, 5" % (sTMP, sW))
    e.valu("v_add_u32", t_b, S(sTMP), t_i3)
    for par in range(2):
        e.valu("v_lshrrev_b32", t_a, 1, t_i3)
        e.valu("v_add_u32", t_a, 4 * par, t_a)
        e.valu("v_xor_b32", t_a, t_a, t_p7)
        e.valu("v_lshlrev_b32", t_a, 4, t_a)
        e.valu("v_lshl_add_u32", V(vXW + par), t_b, 10, t_a)
    raw("s_waitcnt lgkmcnt(0)")
    raw("s_lshl_b32 s%d, s%d, 17" % (sTMP2, sB))
    raw("s_add_u32 s%d, s4, s%d" % (sX, sTMP2))
    raw("s_addc_u32 s%d, s5, 0" % (sX + 1))
    raw("s_mov_b32 s%d, 0x20000" % (sX + 2))
    raw("s_mov_b32 s%d, 0x20000" % (sX + 3))
    raw("s_lshl_b32 s%d, s%d, 8" % (sTMP2, sH))
    raw("s_add_u32 s%d, s10, s%d" % (sWQ, sTMP2))
    raw("s_addc_u32 s%d, s11, 0" % (sWQ + 1))
    raw("s_sub_u32 s%d, 0x400000, s%d" % (sWQ + 2, sTMP2))
    raw("s_mov_b32 s%d, 0x20000" % (sWQ + 3))
    raw("s_add_u32 s%d, s18, 0x%x" % (sFL, FLAG_OFF))
    raw("s_addc_u32 s%d, s19, 0" % (sFL + 1))
    raw("s_mov_b32 s%d, 0x1000" % (sFL + 2))
    raw("s_mov_b32 s%d, 0x20000" % (sFL + 3))
    srdK, srdV, srdX, srdWQ, srdWS, srdWO, srdOI, srdOUT, srdFL, srdDBG = (
        S(x, 4) for x in (sK, sV, sX, sWQ, sWS, sWO, sOI, sOUT, sFL, sDBG))
    raw("s_mov_b32 s%d, s16" % sDBG)
    raw("s_mov_b32 s%d, s17" % (sDBG + 1))
    raw("s_mov_b32 s%d, 256" % (sDBG + 2))
    raw("s_mov_b32 s%d, 0x20000" % (sDBG + 3))
    vSL = V(vT + 1)
    e.valu("v_mov_b32", vSL, 1)
    raw("s_lshl_b32 s%d, s%d, 2" % (sTMP2, sB))
    raw("s_add_u32 s%d, s%d, s%d" % (sTMP2, sTMP2, sW))
    raw("s_lshl_b32 s%d, s%d, 5" % (sTMP2, sTMP2))
    raw("s_add_u32 s%d, s%d, s%d" % (sTMP2, sTMP2, sH))
    raw("s_lshl_b32 s%d, s%d, 2" % (sTMP, sTMP2))
    e.valu("v_mov_b32", V(vFZ), S(sTMP))
    e.valu("v_mov_b32", t_a, 0)
    raw("s_mov_b64 exec, 1")
    e.vmtag = "fz"
    e.buf_store("buffer_store_dword", t_a, V(vFZ), srdFL, 0, 0, "sc1")
    raw("s_mov_b64 exec, -1")
    raw("s_lshl_b32 s%d, s%d, 13" % (sTMP2, sTMP2))
    raw("s_add_u32 s%d, s18, s%d" % (sWS, sTMP2))
    raw("s_addc_u32 s%d, s19, 0" % (sWS + 1))
    raw("s_mov_b32 s%d, 0x2000" % (sWS + 2))
    raw("s_mov_b32 s%d, 0x20000" % (sWS + 3))

    BUF = [(LDS_K, LDS_K + 16384), (LDS_K + 32768, LDS_V), (LDS_K + 49152, LDS_V + 16384),
           (LDS_V + 32768, LDS_V + 49152), (LDS_W + 16384, LDS_W)]
    XWB = [BUF[i] for i in ((0, 1, 2, 3, 4, 2, 3, 4) if o.pro == 0 else (2, 3, 4, 0, 1, 2, 3, 4))]

    def xw_ops(tau):
        wq_base, x_base = XWB[tau]
        ops = []

        def op(kind, j):
            def f():
                e.vmtag = ("xw", tau)
                if kind == "w":
                    if j == 0:
                        raw("s_add_u32 s%d, s%d, %d" % (sTMP, sRHO, tau))
                        raw("s_and_b32 s%d, s%d, 7" % (sTMP, sTMP))
                        raw("s_lshl_b32 s%d, s%d, 7" % (sR7, sTMP))
                    e.salu("s_add_u32", "m0", S(sM0W), wq_base + j * 1024)
                    if j:
                        raw("s_add_u32 s%d, s%d, 0x8000" % (sR19, sR19))
                    else:
                        raw("s_lshl_b32 s%d, s%d, 12" % (sR19, sR7))
                    e.buf_dma(V(vWQL), srdWQ, S(sR19), 0)
                else:
                    e.salu("s_add_u32", "m0", S(sM0W), x_base + j * 1024)
                    if j:
                        raw("s_add_u32 s%d, s%d, 0x2000" % (sR7, sR7))
                    e.buf_dma(V(vXW + (j & 1)), srdX, S(sR7), 0)
            return f
        return [op("w", j) for j in range(4)] + [op("x", j) for j in range(4)]

    def xw_dma(tau):
        for f in xw_ops(tau):
            f()

    xw_dma(0)
    xw_dma(1)
    if o.pro == 0:
        xw_dma(2)

    raw("s_lshl_b32 s%d, s%d, 5" % (sTMP, sB))
    raw("s_add_u32 s%d, s%d, s%d" % (sTMP, sTMP, sH))
    raw("s_lshl_b32 s%d, s%d, 19" % (sTMP2, sTMP))
    raw("s_add_u32 s%d, s6, s%d" % (sK, sTMP2))
    raw("s_addc_u32 s%d, s7, 0" % (sK + 1))
    raw("s_mov_b32 s%d, 0x80000" % (sK + 2))
    raw("s_mov_b32 s%d, 0x20000" % (sK + 3))
    raw("s_add_u32 s%d, s8, s%d" % (sV, sTMP2))
    raw("s_addc_u32 s%d, s9, 0" % (sV + 1))
    raw("s_mov_b32 s%d, 0x80000" % (sV + 2))
    raw("s_mov_b32 s%d, 0x20000" % (sV + 3))
    for j in range(4):
        e.valu("v_add_u32", t_a, 4 * j, t_i4)
        e.valu("v_xor_b32", t_a, t_a, t_i15)
        e.valu("v_lshlrev_b32", t_a, 4, t_a)
        e.valu("v_lshl_add_u32", V(vKD + j), t_w16, 8, t_a)

    def kv_ops(kind, slot, soff_reg, t, pre=None, post=None):
        def op(j):
            def f():
                e = G.e
                e.vmtag = (kind, t)
                e.salu("s_add_u32", "m0", S(sM0W), (LDS_K if kind == "K" else LDS_V) + slot * 16384)
                if j == 0 and pre:
                    for p_ in pre:
                        e.raw(p_)
                if kind == "K":
                    e.buf_dma(V(vKD + j), srdK, S(soff_reg), j * 1024, kflag)
                else:
                    e.buf_dma(V(vVD), srdV, S(soff_reg), j * 1024, vflag)
                if j == 3 and post:
                    e.raw(post)
                    if o.stag:
                        e.raw("s_and_b32 s%d, s%d, 0x7ffff" % (soff_reg, soff_reg))
            return f
        return [op(j) for j in range(4)]

    def kv_init_ops(kind, t):
        reg = sKOFF if kind == "K" else sVOFF
        return kv_ops(kind, t % 4, reg, t, pre=(["s_mov_b32 s%d, s%d" % (reg, sTOFF)] if t == 0 else []),
                      post="s_add_u32 s%d, s%d, 0x4000" % (reg, reg))

    def kv_init(kind, t):
        for f in kv_init_ops(kind, t):
            f()

    if o.stamp:
        raw("v_writelane_b32 v31, s62, 0")
    stamp(1)

    for s in range(8):
        e.valu("v_or_b32", t_a, 2 * s, t_hf)
        e.valu("v_xor_b32", t_a, t_a, t_i15)
        e.valu("v_lshlrev_b32", t_a, 4, t_a)
        e.valu("v_lshl_add_u32", V(vKA + s), t_k31, 8, t_a)

    def tr_addr(dst, blk, blkxor, lo_first, hfshift, rowshift, base):
        e.valu("v_xor_b32", t_a, blk, blkxor)
        e.valu("v_lshlrev_b32", t_a, 1, t_a)
        e.valu("v_add_u32", t_a, t_a, t_ds)
        e.valu("v_lshlrev_b32", t_a, 1, t_a)
        if lo_first:
            e.valu("v_lshrrev_b32", t_b, 1, t_cc)
        else:
            e.valu("v_and_b32", t_b, 1, t_cc)
        e.valu("v_add_u32", t_a, t_a, t_b)
        e.valu("v_lshlrev_b32", t_a, 4, t_a)
        if lo_first:
            e.valu("v_and_b32", t_b, 1, t_cc)
        else:
            e.valu("v_lshrrev_b32", t_b, 1, t_cc)
        e.valu("v_lshl_add_u32", t_a, t_b, 3, t_a)
        e.valu("v_lshl_add_u32", t_b, t_hf, hfshift, t_r)
        e.valu("v_lshl_add_u32", t_a, t_b, rowshift, t_a)
        e.valu("v_add_u32", dst, base, t_a)

    for db in range(4):
        tr_addr(V(vVA + db), db, t_r, True, 2, 8, LDS_V)
        tr_addr(V(vWQA + db), db, t_r, False, 3, 8, 0)
    t_rh = V(tb + 13)
    e.valu("v_lshrrev_b32", t_rh, 1, t_r)
    for nb in range(2):
        tr_addr(V(vRA + nb), nb, t_rh, True, 2, 7, S(sM0WW))
    e.valu("v_lshlrev_b32", t_a, 6, lane)
    e.valu("v_add_u32", V(vPF), S(sM0W), t_a)
    e.valu("v_bfe_u32", t_a, t_i3, 1, 1)
    e.valu("v_lshlrev_b32", t_a, 2, t_a)
    e.valu("v_xor_b32", t_a, t_a, t_p7)
    e.valu("v_lshlrev_b32", t_a, 4, t_a)
    e.valu("v_lshl_add_u32", V(vWD), t_i3, 10, t_a)
    raw("s_add_u32 s%d, s%d, 0x%x" % (sTMP, sM0W, LDS_K + 16384))
    for ee in range(4):
        e.valu("v_bfe_u32", t_b, t_k31, 1, 3)
        e.valu("v_or_b32", t_a, 2 * ee, t_hf)
        e.valu("v_xor_b32", t_a, t_a, t_b)
        e.valu("v_lshlrev_b32", t_a, 4, t_a)
        e.valu("v_lshl_add_u32", t_a, t_k31, 7, t_a)
        e.valu("v_add_u32", V(vXR + ee), S(sTMP), t_a)
    vFA, vF = V(29), V(30)
    vFZ2 = 28
    e.valu("v_mov_b32", V(vFZ2), V(vFZ))
    raw("s_and_b32 s%d, s2, 7" % sTMP2)
    raw("s_lshl_b32 s%d, s%d, 5" % (sTMP2, sTMP2))
    raw("s_lshr_b32 s%d, s2, 3" % sTMP)
    raw("s_add_u32 s%d, s%d, s%d" % (sTMP2, sTMP2, sTMP))
    raw("s_bfe_u32 s%d, s%d, 0x20005" % (sPQ, sTMP2))
    raw("s_lshl_b32 s%d, s%d, 3" % (sPQ, sPQ))
    raw("s_and_b32 s%d, s%d, 7" % (sTMP, sTMP2))
    raw("s_add_u32 s%d, s%d, s%d" % (sPQ, sPQ, sTMP))
    raw("s_bfe_u32 s%d, s%d, 0x10007" % (sNT, sTMP2))
    raw("s_lshl_b32 s%d, s%d, 2" % (sNT, sNT))
    raw("s_bfe_u32 s%d, s%d, 0x20003" % (sTMP, sTMP2))
    raw("s_add_u32 s%d, s%d, s%d" % (sNT, sNT, sTMP))
    raw("s_lshl_b32 s%d, s%d, 1" % (sROT, sTMP))
    for j in range(8):
        raw("s_add_u32 s%d, s%d, %d" % (sTMP, sROT, j))
        raw("s_and_b32 s%d, s%d, 7" % (sTMP, sTMP))
        raw("s_lshl_b32 s%d, s%d, 17" % (sHO + j, sTMP))
    raw("s_lshl_b32 s%d, s%d, 20" % (sTMP, sW))
    raw("s_lshl_b32 s%d, s%d, 7" % (sTMP2, sNT))
    raw("s_add_u32 s%d, s%d, s%d" % (sTMP, sTMP, sTMP2))
    raw("s_add_u32 s%d, s12, s%d" % (sWO, sTMP))
    raw("s_addc_u32 s%d, s13, 0" % (sWO + 1))
    raw("s_sub_u32 s%d, 0x100000, s%d" % (sWO + 2, sTMP2))
    raw("s_mov_b32 s%d, 0x20000" % (sWO + 3))
    raw("s_lshl_b32 s%d, s%d, 15" % (sTMP, sPQ))
    raw("s_add_u32 s%d, s%d, s%d" % (sTMP, sTMP, sTMP2))
    raw("s_add_u32 s%d, s14, s%d" % (sOUT, sTMP))
    raw("s_addc_u32 s%d, s15, 0" % (sOUT + 1))
    raw("s_sub_u32 s%d, 0x8000, s%d" % (sOUT + 2, sTMP2))
    raw("s_mov_b32 s%d, 0x20000" % (sOUT + 3))
    raw("s_lshl_b32 s%d, s%d, 18" % (sTMP, sPQ))
    raw("s_lshl_b32 s%d, s%d, 16" % (sTMP2, sW))
    raw("s_add_u32 s%d, s%d, s%d" % (sTMP, sTMP, sTMP2))
    raw("s_add_u32 s%d, s18, s%d" % (sOI, sTMP))
    raw("s_addc_u32 s%d, s19, 0" % (sOI + 1))
    raw("s_mov_b32 s%d, 0x10000" % (sOI + 2))
    raw("s_mov_b32 s%d, 0x20000" % (sOI + 3))

    e.valu("v_lshrrev_b32", vFA, 4, V(vLN))
    e.valu("v_add_u32", vFA, S(sROT), vFA)
    e.valu("v_and_b32", vFA, 7, vFA)
    raw("s_lshl_b32 s%d, s%d, 5" % (sTMP, sPQ))
    raw("s_lshl_b32 s%d, s%d, 3" % (sTMP2, sW))
    raw("s_add_u32 s%d, s%d, s%d" % (sTMP, sTMP, sTMP2))
    e.valu("v_add_u32", vFA, S(sTMP), vFA)
    e.valu("v_lshlrev_b32", vFA, 2, vFA)


    NQ = 12
    vQF = vS
    vXF = vKF + 16
    vWQB = vS + 48
    vXRB = vS + 52
    for db in range(4):
        e.valu("v_add_u32", V(vWQB + db), LDS_V + 32768, V(vWQA + db))
        e.valu("v_add_u32", V(vXRB + db), LDS_V, V(vXR + db))

    def xread(tau):
        base = XWB[tau][1] - 16384
        for ee in range(4):
            addr, off = (V(vXR + ee), base) if base < 65536 else (V(vXRB + ee), base - LDS_V)
            e.ds_read("ds_read_b128", V(vXF + 16 * (tau & 1) + 4 * ee, 4), addr, off)

    def qidx(tau, i):
        if tau == 7:
            db, ee = divmod(i, 4)
        else:
            ee, db = divmod(i, 4)
        return ee, db

    def qrd(tau, i):
        ee, db = qidx(tau, i)
        fr = vQF + 4 * ((16 * tau + i) % NQ)
        base = XWB[tau][0]
        addr, off = (V(vWQA + db), base) if base < 65536 else (V(vWQB + db), base - (LDS_V + 32768))
        for u in range(2):
            e.ds_read("ds_read_b64_tr_b16", V(fr + 2 * u, 2), addr, off + (16 * ee + 4 * u) * 256)

    def qmf(tau, i):
        ee, db = qidx(tau, i)
        fr = vQF + 4 * ((16 * tau + i) % NQ)
        first = (tau == 0 and ee == 0)
        e.mfma(V(vO + 16 * db, 16), V(fr, 4), V(vXF + 16 * (tau & 1) + 4 * ee, 4),
               0 if first else V(vO + 16 * db, 16))

    e.wait_vm(("xw", 0))
    e.barrier()
    stamp(46)
    xread(0)
    for i in range(8):
        qrd(0, i)
    KVS = {1: [("K", 0), ("K", 1)], 2: [("V", 0), ("K", 2)], 6: [("V", 1), ("K", 3)], 7: [("V", 2)]}
    XWS = {0: [3, 4], 3: [5], 4: [6], 5: [7]}
    if o.pro == 1:
        KVS = {4: [("K", 0), ("K", 1)], 5: [("V", 0), ("K", 2)], 6: [("V", 1), ("K", 3)], 7: [("V", 2)]}
        XWS = {0: [2, 3], 1: [4, 5], 2: [6], 3: [7]}
    late_kv = []
    if o.pro == 2:
        KVS = {4: [("K", 0), ("K", 1)], 5: [("V", 0)], 6: [("K", 2)]}
        XWS = {0: [2, 3], 1: [4, 5], 2: [6], 3: [7]}
        late_kv = [("V", 1), ("K", 3), ("V", 2)]
    if o.pro == 3:
        KVS = {4: [("K", 0)], 5: [("K", 1)], 6: [("V", 0)]}
        XWS = {0: [2, 3], 1: [4, 5], 2: [6], 3: [7]}
        late_kv = [("K", 2), ("V", 1), ("K", 3), ("V", 2)]
    for tau in range(7):
        dq = []
        for t in XWS.get(tau, []):
            dq += xw_ops(t)
        for kind, t in KVS.get(tau, []):
            dq += kv_init_ops(kind, t)
        if o.pf and tau >= 6:
            lst = [("V", 1), ("K", 3), ("V", 2)] + [x for d in range(o.pf) for x in (("K", 4 + d), ("V", 3 + d))]
            half = (len(lst) + 1) // 2
            for kind, t in (lst[:half] if tau == 6 else lst[half:]):
                def f(kind=kind, t=t):
                    e.vmtag = "pf"
                    raw("s_add_u32 s%d, s%d, 0x%x" % (sTMP, sTOFF, t * 16384))
                    e.buf_load("buffer_load_dword", V(vPD), V(vPF), srdK if kind == "K" else srdV, S(sTMP), 0, o.pff)
                dq.append(f)
        pos = [int((k + 0.5) * 12 / max(len(dq), 1)) for k in range(len(dq))]
        for i in range(12):
            qmf(tau, i)
            if i < 8:
                qrd(tau, i + 8)
            while dq and pos[0] <= i:
                pos.pop(0)
                dq.pop(0)()
        assert not dq
        if tau == (5 if o.pro == 0 else 3):
            raw("s_cmp_lg_u32 s%d, 0" % sW)
            raw("s_cbranch_scc1 L_noclaim")
            raw("v_mov_b32 v%d, 0" % vT)
            raw("s_mov_b64 exec, 1")
            raw("buffer_atomic_add %s, v%d, s[%d:%d], 0 offen sc1" % (vSL[0], vT, sDBG, sDBG + 3))
            raw("s_mov_b64 exec, -1")
            e.label("L_noclaim")
        if tau < 7:
            e.wait_vm(("xw", tau + 1), *([("K", 0)] if tau == 6 else []))
            e.lgkm0()
            e.barrier()
            if o.stamp > 1:
                stamp(53 + tau)
            xread(tau + 1)
            for i in range(8):
                qrd(tau + 1, i)
        for i in range(12, 16):
            qmf(tau, i)
    def kread(slot, i):
        kb, s = divmod(i, 8)
        G.e.ds_read("ds_read_b128", V(vKF + 4 * (i % NKF), 4), V(vKA + s), LDS_K + slot * 16384 + kb * 8192)

    PVORD = {"dbmajor": False}

    def pv_index(j):
        if PVORD["dbmajor"]:
            db, ks = divmod(j, 4)
        else:
            ks, db = divmod(j, 4)
        return ks, db

    def vread(slot, j):
        ks, db = pv_index(j)
        fr = vVF + 4 * (j % NVF)
        for u in range(2):
            G.e.ds_read("ds_read_b64_tr_b16", V(fr + 2 * u, 2), V(vVA + db), slot * 16384 + (16 * ks + 8 * u) * 256)

    def qk_mfma(sb, i, cinit):
        kb, s = divmod(i, 8)
        d = V(sb + 16 * kb, 16)
        c = d if s > 0 else cinit
        G.e.mfma(d, V(vKF + 4 * (i % NKF), 4), V(vQ + 4 * s, 4), c)

    def pv_mfma(sb, j):
        ks, db = pv_index(j)
        p = V(sb + 8 * ks, 4)
        d = V(vO + 16 * db, 16)
        G.e.mfma(d, V(vVF + 4 * (j % NVF), 4), p, d)

    def softmax_ops(sb, ks):
        b = sb + 8 * ks
        ex = lambda i: (2, lambda: G.e.trans("v_exp_f32", V(b + i), V(b + i)))
        ad = lambda i: (1, lambda: G.e.valu("v_add_f32", V(vL0 + (i & 1)), V(vL0 + (i & 1)), V(b + i)))
        cv = lambda k: (1, lambda: G.e.valu("v_cvt_pk_bf16_f32", V(b + k), V(b + 2 * k), V(b + 2 * k + 1)))
        return [ex(0), ex(1), ex(2), ex(3), ad(0), ad(1), ex(4), ad(2), ex(5), ad(3), cv(0), ex(6), ad(4),
                ex(7), ad(5), cv(1), ad(6), ad(7), cv(2), cv(3)]

    vM = V(vT)

    def max_ops(sb, half):
        ops = []
        b = sb + 16 * half
        if half == 0:
            ops.append((1, lambda: G.e.valu("v_max3_f32", vM, V(b), V(b + 1), V(b + 2))))
            for k in range(3, 15, 2):
                ops.append((1, lambda k=k: G.e.valu("v_max3_f32", vM, vM, V(b + k), V(b + k + 1))))
            ops.append((1, lambda: G.e.valu("v_max_f32", vM, vM, V(b + 15))))
        else:
            for k in range(0, 16, 2):
                ops.append((1, lambda k=k: G.e.valu("v_max3_f32", vM, vM, V(b + k), V(b + k + 1))))
        return ops

    def full_max():
        e = G.e
        t = V(vT + 1)
        e.valu("v_mov_b32", t, vM)
        e.ins("v_permlane32_swap_b32 %s, %s" % (vM[0], t[0]), "perm", dst=vM[1] + t[1], src=vM[1] + t[1])
        e.valu("v_max_f32", vM, vM, t)

    rare = []

    def gen_rare(lbl, ret, sb):
        e = G.e
        e.label(lbl)
        e.nop(16)
        full_max()
        e.valu("v_max_f32", vM, 0, vM)
        f = V(vT + 2)
        e.ins("v_exp_f32 %s, -%s" % (f[0], vM[0]), "trans", dst=f[1], src=vM[1])
        for i in range(32):
            e.valu("v_sub_f32", V(sb + i), V(sb + i), vM)
        for i in range(16):
            e.valu("v_sub_f32", V(vC + i), V(vC + i), vM)
        for i in range(64):
            e.valu("v_mul_f32", V(vO + i), V(vO + i), f)
        e.valu("v_mul_f32", V(vL0), V(vL0), f)
        e.valu("v_mul_f32", V(vL1), V(vL1), f)
        e.nop(4)
        e.raw("s_branch %s" % ret)

    def wo_ops(m0base_sgpr, m0_imm, soff_sgpr, row0, n, tag):
        def op(i):
            def f():
                e = G.e
                e.vmtag = tag
                e.salu("s_add_u32", "m0", S(m0base_sgpr), m0_imm + i * 1024)
                e.raw("s_add_u32 s%d, s%d, 0x%x" % (sTMP, soff_sgpr, (row0 + 8 * i) * 1024))
                e.buf_dma(V(vWD), srdWO, S(sTMP), 0, woflag)
            return f
        return [op(i) for i in range(n)]

    def wo_step_reads(step):
        e = G.e
        j, half = step >> 1, step & 1
        for sg in range(4):
            for nb in range(2):
                for u in range(2):
                    e.ds_read("ds_read_b64_tr_b16", A(64 * j + 8 * (4 * half + sg) + 4 * nb + 2 * u, 2),
                              V(vRA + nb), (16 * sg + 8 * u) * 128)

    QREG = [LDS_K + 0, LDS_K + 16384, LDS_V + 0, LDS_K + 32768, LDS_V + 16384, LDS_K + 49152, LDS_V + 32768, None]

    def quarter_ops(q, jbase, tag):
        j = jbase + (q >> 2)
        if QREG[q] is None:
            return wo_ops(sM0WW, 0, sHO + j, 32 * (q & 3), 4, tag)
        return wo_ops(sM0W, QREG[q], sHO + j, 32 * (q & 3), 4, tag)

    def quarter_dma(q, jbase, tag):
        for f in quarter_ops(q, jbase, tag):
            f()

    def final_l():
        e = G.e
        l = V(vL0)
        t = V(vT + 1)
        e.valu("v_add_f32", l, l, V(vL1))
        e.valu("v_mov_b32", t, l)
        e.ins("v_permlane32_swap_b32 %s, %s" % (l[0], t[0]), "perm", dst=l[1] + t[1], src=l[1] + t[1])
        e.valu("v_add_f32", l, l, t)
        e.trans("v_rcp_f32", l, l)
        e.valu("v_add_u32", V(vT + 2), 4096, V(vLN))

    def pack_store(sg):
        e = G.e
        l = V(vL0)
        e.vmtag = "Ost"
        base = vO + 8 * sg
        for k in range(8):
            e.valu("v_mul_f32", V(base + k), V(base + k), l)
        fr = vQ + 4 * sg
        for k in range(4):
            e.valu("v_cvt_pk_bf16_f32", V(fr + k), V(base + 2 * k), V(base + 2 * k + 1))
        e.buf_store("buffer_store_dwordx4", V(fr, 4), V(vLN) if sg < 4 else V(vT + 2), srdWS, 0, (sg & 3) * 1024, "sc1")

    def touch_ops(dk, dv):
        def op(kind, d):
            def f():
                e = G.e
                e.vmtag = "pf"
                e.raw("s_add_u32 s%d, s%d, 0x%x" % (sTMP, sKOFF if kind == "K" else sVOFF, d * 16384))
                e.buf_load("buffer_load_dword", V(vPD), V(vPF), srdK if kind == "K" else srdV, S(sTMP), 0, o.pff)
            return f
        return [op("K", dk), op("V", dv)]

    def tile(t, mode, uid):
        e = G.e
        t4 = t % 4
        do_k = t + 4 <= 31
        do_v = t + 3 <= 31
        do_qk = t + 1 <= 31
        cur = vS + 32 * (t4 & 1)
        nxt = vS + 32 * ((t4 + 1) & 1)
        kslot = (t4 + 1) % 4
        vslot = t4 % 4
        vq = []
        marks = {}
        for ks in range(4):
            vq += softmax_ops(cur, ks)
            marks[ks] = len(vq)
        state = {"i": 0}

        def run_upto(n):
            while state["i"] < n:
                vq[state["i"]][1]()
                state["i"] += 1

        def run_budget(budget, lst, st):
            while st["i"] < len(lst) and budget > 0:
                c, fn = lst[st["i"]]
                fn()
                st["i"] += 1
                budget -= c

        if t == 31:
            run_upto(len(vq))
            if o.ovl:
                PVORD["dbmajor"] = True
                final_l()
        if o.stamp:
            e.raw("s_add_u32 s59, s59, 1")
        tags = [("K", t + 1), ("V", t)]
        wr = (t4 == 0 and t > 0) if o.wlast else (t4 == 3)
        wstep = t // 4 - 1 if o.wlast else t // 4
        if wr:
            tags.append(("W", wstep))
        if t == 31 and o.wlast:
            tags.append(("W", 7))
        if t == 31:
            tags.append("cnt")
        e.wait_vm(*tags)
        e.barrier()
        if not o.notile:
            stamp(S(59))
        if o.wlast and t4 == 0:
            if mode == "loop":
                for k in range(6):
                    e.raw("s_cmp_eq_u32 s%d, %d" % (sCNT, k + 1))
                    e.raw("s_cbranch_scc1 L_wrd_%d" % k)
                e.label("L_wrd_ret")
            else:
                wo_step_reads(6)
                e.ldsq = []
        if t4 == 3:
            if mode == "loop":
                if not o.wlast:
                    for k in range(7):
                        e.raw("s_cmp_eq_u32 s%d, %d" % (sCNT, k))
                        e.raw("s_cbranch_scc1 L_wrd_%d" % k)
                    e.label("L_wrd_ret")
            else:
                wo_step_reads(7)
                e.ldsq = []
                e.raw("s_mov_b32 s%d, 0x20000" % sTO)
                e.label("L_cnt")
                e.ins("v_readfirstlane_b32 s%d, v%d" % (sTMP, vCK), "rfl", dst=["s%d" % sTMP], src=["v%d" % vCK])
                e.raw("s_cmp_ge_u32 s%d, 256" % sTMP)
                e.raw("s_cbranch_scc1 L_cnt_ok")
                e.raw("s_sleep 2")
                e.valu("v_mov_b32", V(vCK), 0)
                e.raw("buffer_load_dword v%d, v%d, s[%d:%d], 0 offen sc1" % (vCK, vCK, sDBG, sDBG + 3))
                e.raw("s_waitcnt vmcnt(0)")
                e.raw("s_sub_u32 s%d, s%d, 1" % (sTO, sTO))
                e.raw("s_cmp_lg_u32 s%d, 0" % sTO)
                e.raw("s_cbranch_scc1 L_cnt")
                e.raw("s_branch L_done")
                e.label("L_cnt_ok")
                e.vmtag = "poll"
                e.buf_load("buffer_load_dword", vF, vFA, srdFL, 0, 0, "sc1")
        if do_qk:
            for i in range(NKF):
                kread(kslot, i)
        dq = []
        if t4 == 0:
            if mode == "loop":
                e.raw("s_lshr_b32 s%d, s%d, 1" % (sTMP2, sCNT))
                e.raw("s_add_u32 s%d, s%d, s%d" % (sTMP2, sTMP2, sROT))
                e.raw("s_and_b32 s%d, s%d, 7" % (sTMP2, sTMP2))
                e.raw("s_lshl_b32 s%d, s%d, 1" % (sTMP2, sTMP2))
                e.raw("s_and_b32 s%d, s%d, 1" % (sTMP, sCNT))
                e.raw("s_add_u32 s%d, s%d, s%d" % (sTMP2, sTMP2, sTMP))
                e.raw("s_lshl_b32 s%d, s%d, 16" % (sTMP2, sTMP2))
                dq += wo_ops(sM0WW, 0, sTMP2, 0, 8, ("W", t // 4))
            else:
                dq += wo_ops(sM0WW, 0, sHO + 3, 64, 8, ("W", 7))
        kq = []
        if do_k:
            kq += kv_ops("K", t4 % 4, sKOFF, t + 4, post="s_add_u32 s%d, s%d, 0x4000" % (sKOFF, sKOFF))
        if do_v:
            kq += kv_ops("V", (t4 + 3) % 4, sVOFF, t + 3, post="s_add_u32 s%d, s%d, 0x4000" % (sVOFF, sVOFF))
        if o.pf and mode == "loop":
            kq += touch_ops(o.pf - 1, o.pf - 1)
        if o.wlast:
            dq = kq + dq
        else:
            dq = dq + kq
        if mode == "tail":
            qs = {28: [0], 29: [1, 2], 30: [3, 4], 31: [5, 6, 7]}[t]
            for q in qs:
                dq += quarter_ops(q, 4, "Q45")
            if t == 30:
                e.vmtag = "cnt"
                e.valu("v_mov_b32", V(vCK), 0)
                e.buf_load("buffer_load_dword", V(vCK), V(vCK), srdDBG, 0, 0, "sc1")

        nkv = len(kq) if o.wlast else 0
        gcount = {"g": 0}

        def dma_next(force=False):
            g = gcount["g"]
            gcount["g"] += 1
            if not dq:
                return
            issued_kv = len(kq) - min(len(kq), max(0, nkv - (total_dq - len(dq))))
            in_kv = (total_dq - len(dq)) < nkv
            if force or (in_kv and g % o.kstep == 0) or (not in_kv and g % o.dstep == 0):
                dq.pop(0)()
        total_dq = len(dq)
        mq0 = max_ops(nxt, 0) if do_qk else []
        mq1 = max_ops(nxt, 1) if do_qk else []
        ms0, ms1 = {"i": 0}, {"i": 0}
        if do_qk:
            run_budget(8, vq, state)
            for g in range(16):
                qk_mfma(nxt, g, V(vC, 16))
                if g + NKF < 16:
                    kread(kslot, g + NKF)
                if 6 <= g < 6 + NVF:
                    vread(vslot, g - 6)
                dma_next()
                run_budget(4, vq, state)
                if g >= 11:
                    run_budget(2, mq0, ms0)
        else:
            for j in range(NVF):
                vread(vslot, j)
        for j in range(16):
            ks = j // 4
            run_upto(marks[ks])
            pv_mfma(cur, j)
            if j + NVF < 16:
                vread(vslot, j + NVF)
            dma_next(force=not do_qk)
            if t == 31 and o.ovl and j >= 7 and j % 2 == 1:
                pack_store((j - 7) // 2)
            run_budget(4, vq, state)
            if do_qk:
                run_budget(99, mq0, ms0)
                if j >= 10:
                    run_budget(2, mq1, ms1)
        assert state["i"] == len(vq)
        assert not dq
        if do_qk:
            run_budget(99, mq1, ms1)
            e.ins("v_cmp_lt_f32 vcc, 0x%x, %s" % (f32bits(THRESH), vM[0]), "valu", dst=["vcc"], src=vM[1])
            lbl, ret = "L_rare_%s" % uid, "L_ret_%s" % uid
            e.raw("s_cbranch_vccnz %s" % lbl)
            e.label(ret)
            rare.append((lbl, ret, nxt))
        assert not e.ldsq

    raw("s_mov_b32 s%d, 0x%x" % (sTRY, f32bits(SCALE)))

    def pack_ops(db):
        ops = []
        for r in range(0, 16, 2):
            a_, b_ = V(vO + 16 * db + r), V(vO + 16 * db + r + 1)
            ops.append(lambda a_=a_: e.valu("v_mul_f32", a_, S(sTRY), a_))
            ops.append(lambda b_=b_: e.valu("v_mul_f32", b_, S(sTRY), b_))
            ops.append(lambda a_=a_, b_=b_, r=r: e.valu("v_cvt_pk_bf16_f32", V(vQ + 8 * db + r // 2), a_, b_))
        return ops

    def zero_ops(db):
        return [lambda i=i: e.valu("v_mov_b32", V(vO + 16 * db + i), 0) for i in range(16)]

    pq_ = []
    for i in range(16):
        qmf(7, i)
        if i < 8:
            qrd(7, i + 8)
        if i >= 10:
            kread(0, i - 10)
        if i % 4 == 1 and i > 4:
            pq_ += pack_ops(i // 4 - 1)
        for _ in range(6):
            if pq_:
                pq_.pop(0)()
    lq = []
    for kind, t in late_kv:
        lq += kv_init_ops(kind, t)
    pq_ += zero_ops(0) + zero_ops(1)
    for g in range(16):
        if g == 6:
            while pq_ and npack3["left"] > 0:
                pq_.pop(0)()
                npack3["left"] -= 1
        qk_mfma(vS, g, 0)
        if g + NKF < 16:
            kread(0, g + NKF)
        if lq:
            lq.pop(0)()
        if g == 1:
            p3 = pack_ops(3)
            npack3 = {"left": len(pq_) + len(p3)}
            pq_ += p3 + zero_ops(2) + zero_ops(3)
        for _ in range(7):
            if pq_:
                pq_.pop(0)()
                if g >= 1:
                    npack3["left"] -= 1
    while pq_:
        pq_.pop(0)()
    e.valu("v_mov_b32", V(vL0), 0)
    e.valu("v_mov_b32", V(vL1), 0)
    stamp(2)
    for c, fn in max_ops(vS, 0) + max_ops(vS, 1):
        fn()
    full_max()
    for i in range(32):
        e.valu("v_sub_f32", V(vS + i), V(vS + i), vM)
    for i in range(16):
        e.valu("v_sub_f32", V(vC + i), 0, vM)

    raw("s_mov_b32 s%d, 0" % sCNT)
    stamp(3)
    if o.stamp:
        raw("s_memtime s[60:61]")
        raw("s_waitcnt lgkmcnt(0)")
        raw("v_writelane_b32 v31, s60, 6")
        raw("s_mov_b32 s59, 7")

    def body(p):
        G.e.label("L_loop")
        for t4 in range(4):
            tile(4 * p + t4, "loop", "m%d" % t4)
        G.e.raw("s_add_u32 s%d, s%d, 1" % (sCNT, sCNT))
        G.e.raw("s_cmp_lt_u32 s%d, 7" % sCNT)
        G.e.raw("s_cbranch_scc1 L_loop")

    real = G.e
    sim = copy.deepcopy(real)
    G.e = sim
    logs = []
    backs = []
    for p in range(7):
        sim.vm_log = []
        body(p)
        logs.append(list(sim.vm_log))
        backs.append(sim.snapshot())
    over = [min(l[i] for l in logs) for i in range(len(logs[0]))]
    sys.stderr.write("loop vmcnt sites: %s\n" % logs)
    G.e = real
    e = real
    rare.clear()
    e.merge(backs[0])
    e.merge(backs[-1])
    e.vm_log = []
    e.vm_over = over
    body(0)
    e.vm_over = None
    e.vmq = list(sim.vmq)
    for t in range(28, 32):
        tile(t, "tail", "t%d" % t)
    stamp(4)
    if o.stamp:
        raw("s_memtime s[60:61]")
        raw("s_waitcnt lgkmcnt(0)")
        raw("v_writelane_b32 v31, s60, 7")

    if not o.ovl:
        final_l()
    for sg in range(5 if o.ovl else 0, 8):
        pack_store(sg)
    vQA = 1
    raw("s_sub_u32 s%d, s%d, s%d" % (sTMP, sM0W, sM0WW))
    raw("s_add_u32 s%d, s%d, 0x%x" % (sTMP2, sTMP, LDS_V))
    for nb in range(2):
        e.valu("v_add_u32", V(vQA + nb), S(sTMP), V(vRA + nb))
        e.valu("v_add_u32", V(vQA + 2 + nb), S(sTMP2), V(vRA + nb))
    def quarter_reads(q, dstfn):
        for s2 in range(2):
            for nb in range(2):
                for u in range(2):
                    sg = 2 * (q & 3) + s2
                    off = (16 * s2 + 8 * u) * 128
                    if QREG[q] is None:
                        addr = V(vRA + nb)
                    elif QREG[q] < LDS_V:
                        addr, off = V(vQA + nb), off + QREG[q]
                    else:
                        addr, off = V(vQA + 2 + nb), off + QREG[q] - LDS_V
                    e.ds_read("ds_read_b64_tr_b16", dstfn(q >> 2, sg, nb, u), addr, off)

    vW45 = 128
    vAcc = vQ
    vOB = vO

    def need_flag(j, sfx=""):
        raw("s_bitcmp1_b32 s%d, %d" % (sMASK, j))
        raw("s_cbranch_scc1 L_ok_%d" % j)
        e.label("L_spin_%d" % j)
        raw("buffer_load_dword %s, %s, s[%d:%d], 0 offen sc1" % (vF[0], vFA[0], sFL, sFL + 3))
        raw("s_waitcnt vmcnt(0)")
        raw("v_cmp_ne_u32 vcc, 0, %s" % vF[0])
        raw("s_nop 1")
        raw("s_mov_b32 s%d, vcc_lo" % sMASK)
        raw("s_bitcmp1_b32 s%d, %d" % (sMASK, j))
        raw("s_cbranch_scc1 L_ok_%d" % j)
        raw("s_sleep 1")
        raw("s_sub_u32 s%d, s%d, 1" % (sTO, sTO))
        raw("s_cmp_lg_u32 s%d, 0" % sTO)
        raw("s_cbranch_scc1 L_spin_%d" % j)
        raw("s_branch L_done")
        e.label("L_ok_%d" % j)

    def obuf(j, sg):
        if o.deep and j in (3, 7):
            return A(4 * sg, 4)
        if o.deep and j == 5:
            return A(32 + 4 * sg, 4)
        if o.deep:
            return V(vOB + (32 if j in (1, 4) else 0) + 4 * sg, 4)
        return V(vOB + 32 * (j & 1) + 4 * sg, 4)

    def o_loads(j, check=True):
        if check:
            need_flag(j)
        e.vmtag = ("O", j)
        raw("s_lshr_b32 s%d, s%d, 4" % (sR7, sHO + j))
        raw("s_add_u32 s%d, s%d, 0x1000" % (sR19, sR7))
        for sg in range(8):
            e.buf_load("buffer_load_dwordx4", obuf(j, sg), V(vLN), srdOI,
                       S(sR7 if sg < 4 else sR19), (sg & 3) * 1024, "sc1")

    def q45_reads():
        for q in range(8):
            quarter_reads(q, lambda hh, sg, nb, u: V(vW45 + 64 * hh + 8 * sg + 4 * nb + 2 * u, 2))

    def flag_store():
        e.wait_vm("Ost")
        e.valu("v_mov_b32", V(vT), 1)
        raw("s_mov_b64 exec, 1")
        e.vmtag = "flag"
        e.buf_store("buffer_store_dword", V(vT), V(vFZ2), srdFL, 0, 0, "sc1")
        raw("s_mov_b64 exec, -1")

    def wfrag(j, sg, nb):
        if j < 4:
            return A(64 * j + 8 * sg + 4 * nb, 4)
        if j < 6:
            return V(vW45 + 64 * (j - 4) + 8 * sg + 4 * nb, 4)
        return A(64 * (j - 6) + 8 * sg + 4 * nb, 4)

    e.wait_vm("Q45", "poll")
    raw("v_cmp_ne_u32 vcc, 0, %s" % vF[0])
    raw("s_nop 1")
    raw("s_mov_b32 s%d, vcc_lo" % sMASK)
    raw("s_and_b32 s%d, s%d, 3" % (sTMP, sMASK))
    raw("s_cmp_eq_u32 s%d, 3" % sTMP)
    raw("s_cbranch_scc0 L_slow")
    fork = copy.deepcopy(e)
    o_loads(0, False)
    o_loads(1, False)
    q45_reads()
    flag_store()
    e.lgkm0()
    raw("s_mov_b32 s%d, 0" % sTRY)
    raw("s_branch L_join")
    fast_lines = e.lines
    fork.lines = fast_lines
    G.e = e = fork
    e.label("L_slow")
    q45_reads()
    flag_store()
    e.lgkm0()
    if o.early67:
        vq_save, vt_save = list(e.vmq), e.vm_total
        for q in range(8):
            quarter_dma(q, 6, "Q67e")
        e.vmq, e.vm_total = vq_save, vt_save
        raw("s_mov_b32 s%d, 1" % sTRY)
    o_loads(0)
    o_loads(1)
    e.label("L_join")
    e.nop(2)
    stamp(50)
    dq = []
    for q in range(8):
        dq += quarter_ops(q, 6, "Q67")
    NEXT = {0: [2, 3], 1: [4, 5], 2: [6], 3: [7]}
    vRING = 6
    for j in range(8 if o.deep else 0):
        e.wait_vm(("O", j))
        if j == 0:
            stamp(51)
        items = [(sg, nb) for sg in range(8) for nb in range(2)]

        def rd(i, j=j):
            sg, nb = items[i]
            q = 4 * (j - 6) + (sg >> 1)
            for u in range(2):
                off = (16 * (sg & 1) + 8 * u) * 128
                if QREG[q] is None:
                    addr = V(vRA + nb)
                elif QREG[q] < LDS_V:
                    addr, off = V(vQA + nb), off + QREG[q]
                else:
                    addr, off = V(vQA + 2 + nb), off + QREG[q] - LDS_V
                e.ds_read("ds_read_b64_tr_b16", V(vRING + 4 * (i % 4) + 2 * u, 2), addr, off)
        if j == 6:
            raw("s_waitcnt vmcnt(%d)" % (e.vm_total - q67_mark))
        if j >= 6:
            for i in range(4):
                rd(i)
        for i, (sg, nb) in enumerate(items):
            d = V(vAcc + 16 * nb, 16)
            a_ = wfrag(j, sg, nb) if j < 6 else V(vRING + 4 * (i % 4), 4)
            e.mfma(d, a_, obuf(j, sg), 0 if (j == 0 and sg == 0) else d)
            if j >= 6 and i + 4 < 16:
                rd(i + 4)
            if dq and i % 2 == 0:
                lbl = "L_sk67_%d" % len(dq)
                raw("s_cmp_eq_u32 s%d, 1" % sTRY)
                raw("s_cbranch_scc1 %s" % lbl)
                vq_save, vt_save = list(e.vmq), e.vm_total
                dq.pop(0)()
                e.vmq, e.vm_total = vq_save, vt_save
                q67_mark = e.vm_total
                e.label(lbl)
        for n_ in NEXT.get(j, []):
            o_loads(n_)
    for j in range(0 if o.deep else 8):
        e.wait_vm(("O", j))
        if j == 0:
            stamp(51)
        for sg in range(8):
            for nb in range(2):
                d = V(vAcc + 16 * nb, 16)
                e.mfma(d, wfrag(j, sg, nb), V(vOB + 32 * (j & 1) + 4 * sg, 4), 0 if (j == 0 and sg == 0) else d)
                if dq and (nb == 0 or j > 0):
                    if o.early67:
                        lbl = "L_sk67_%d" % len(dq)
                        raw("s_cmp_eq_u32 s%d, 1" % sTRY)
                        raw("s_cbranch_scc1 %s" % lbl)
                        vq_save, vt_save = list(e.vmq), e.vm_total
                        dq.pop(0)()
                        e.vmq, e.vm_total = vq_save, vt_save
                        q67_mark = e.vm_total
                        e.label(lbl)
                    else:
                        dq.pop(0)()
        if j + 2 < 8:
            o_loads(j + 2)
        if j == 3:
            assert not dq
            if o.early67:
                raw("s_waitcnt vmcnt(%d)" % (e.vm_total - q67_mark))
            else:
                e.wait_vm("Q67")
            for q in range(8):
                quarter_reads(q, lambda hh, sg, nb, u: A(64 * hh + 8 * sg + 4 * nb + 2 * u, 2))
    stamp(52)
    wa = V(7)
    e.valu("v_add_u32", wa, S(sM0WW), V(vLN))
    for q in range(8):
        e.ds_write("ds_write_b128", wa, V(vAcc + 4 * q, 4), q * 1024)
    e.lgkm0()
    e.barrier()
    raw("s_lshl_b32 s%d, s%d, 11" % (sTMP, sW))
    raw("s_add_u32 s%d, s%d, 0x%x" % (sTMP, sTMP, LDS_W))
    ra = V(8)
    e.valu("v_add_u32", ra, S(sTMP), V(vLN))
    for k in range(2):
        for ww in range(4):
            e.ds_read("ds_read_b128", V(64 + 16 * k + 4 * ww, 4), ra, ww * 8192 + k * 1024)
    oa = V(9)
    e.valu("v_bfe_u32", oa, V(vLN), 4, 5)
    e.valu("v_lshlrev_b32", oa, 10, oa)
    e.valu("v_lshrrev_b32", V(10), 9, V(vLN))
    e.valu("v_lshl_add_u32", oa, V(10), 3, oa)
    raw("s_lshl_b32 s%d, s%d, 5" % (sTMP, sW))
    e.valu("v_add_u32", oa, S(sTMP), oa)
    for k in range(2):
        b = 64 + 16 * k
        for c in range(4):
            e.valu("v_add_f32", V(b + c), V(b + c), V(b + 4 + c))
            e.valu("v_add_f32", V(b + 8 + c), V(b + 8 + c), V(b + 12 + c))
            e.valu("v_add_f32", V(b + c), V(b + c), V(b + 8 + c))
        e.valu("v_cvt_pk_bf16_f32", V(12 + 2 * k), V(b), V(b + 1))
        e.valu("v_cvt_pk_bf16_f32", V(13 + 2 * k), V(b + 2), V(b + 3))
        e.buf_store("buffer_store_dwordx2", V(12 + 2 * k, 2), oa, srdOUT, 0, 16 * k)
    if o.stamp:
        e.vmcnt(0)
        stamp(5)
        if o.sdbg:
            for i, idx in enumerate([0, 1, 46, 2, 3, 16, 24, 32, 4, 50, 51, 52, 5]):
                raw("v_readlane_b32 s47, v31, %d" % idx)
                raw("s_nop 3")
                raw("v_writelane_b32 v29, s47, %d" % (1 + i))
            raw("v_readlane_b32 s47, v31, 0")
            raw("s_nop 3")
            raw("s_not_b32 s47, s47")
            raw("v_writelane_b32 v29, s47, 15")
            raw("v_readlane_b32 s47, v31, 4")
            raw("s_nop 3")
            raw("s_not_b32 s47, s47")
            raw("v_writelane_b32 v29, s47, 14")
            e.valu("v_lshrrev_b32", V(30), 2, V(vLN))
            raw("s_mov_b64 exec, 0xfffe")
            raw("buffer_atomic_umax v29, v30, s[%d:%d], 0 offen sc1" % (sDBG, sDBG + 3))
            raw("s_mov_b64 exec, -1")
            raw("s_branch L_done")
        raw("s_lshl_b32 s47, s2, 2")
        raw("s_add_u32 s47, s47, s%d" % sW)
        raw("s_lshl_b32 s47, s47, 8")
        raw("s_add_u32 s47, s47, 0x%x" % STAMP_OFF)
        raw("s_add_u32 s92, s18, s47")
        raw("s_addc_u32 s93, s19, 0")
        raw("s_mov_b32 s94, 256")
        raw("s_mov_b32 s95, 0x20000")
        e.valu("v_lshrrev_b32", V(30), 2, V(vLN))
        e.buf_store("buffer_store_dword", V(31), V(30), S(92, 4), 0, 0)
    e.label("L_done")
    raw("s_endpgm")
    for lbl, ret, sb in rare:
        gen_rare(lbl, ret, sb)
    for k in range(6 if o.wlast else 7):
        e.label("L_wrd_%d" % k)
        wo_step_reads(k)
        e.ldsq = []
        raw("s_branch L_wrd_ret")
    return e


def build(o):
    a = gen(o)
    out = HEADER
    out += "; @launch grid=(256,1,1) block=(256,1,1) lds=163840\n"
    out += '.amdgcn_target "amdgcn-amd-amdhsa--gfx950"\n.text\n'
    out += ".globl %s\n.p2align 8\n.type %s,@function\n%s:\n" % (NAME, NAME, NAME)
    out += a.text()
    out += '.section .rodata,"a"\n'
    out += """.p2align 6
.amdhsa_kernel %s
  .amdhsa_next_free_vgpr 512
  .amdhsa_next_free_sgpr 100
  .amdhsa_accum_offset 256
  .amdhsa_group_segment_fixed_size 0
  .amdhsa_kernarg_size 64
  .amdhsa_user_sgpr_count 2
  .amdhsa_user_sgpr_kernarg_segment_ptr 1
  .amdhsa_system_sgpr_workgroup_id_x 1
.end_amdhsa_kernel
""" % NAME
    sys.stderr.write("%s nops=%d\n" % (a.count, a.nops))
    return out


if __name__ == "__main__":
    o = Opt()
    for arg in sys.argv[2:]:
        k, v = arg.split("=")
        setattr(o, k, v if k in ("kf", "vf", "wof", "pff") else int(v))
    open(sys.argv[1], "w").write(build(o))
```

```python
import copy


def R(kind, base, n=1):
    names = ["%s%d" % (kind, base + i) for i in range(n)]
    if n == 1:
        return ("%s%d" % (kind, base), names)
    return ("%s[%d:%d]" % (kind, base, base + n - 1), names)


def V(base, n=1):
    return R("v", base, n)


def A(base, n=1):
    return R("a", base, n)


def S(base, n=1):
    return R("s", base, n)


class Emit:
    def __init__(self):
        self.lines = []
        self.pos = 0
        self.valu_w = {}
        self.trans_w = {}
        self.mfma_w = {}
        self.mfma_c = {}
        self.store_d = {}
        self.sgpr_valu_w = {}
        self.m0_w = -100
        self.ldsq = []
        self.nops = 0
        self.count = {}
        self.vmq = []
        self.vmtag = None
        self.vm_log = []
        self.vm_over = None
        self.vm_total = 0

    def snapshot(self):
        st = {}
        for name in ("valu_w", "trans_w", "store_d", "sgpr_valu_w"):
            d = getattr(self, name)
            st[name] = {r: self.pos - p for r, p in d.items() if self.pos - p < 32}
        st["mfma_w"] = {r: (self.pos - p, k, d) for r, (p, k, d) in self.mfma_w.items() if self.pos - p < 32}
        st["mfma_c"] = {r: (self.pos - p, k) for r, (p, k) in self.mfma_c.items() if self.pos - p < 32}
        st["m0"] = self.pos - self.m0_w
        assert not self.ldsq, "LDS queue must be empty at snapshot"
        return st

    def merge(self, st):
        for name in ("valu_w", "trans_w", "store_d", "sgpr_valu_w"):
            d = getattr(self, name)
            for r, age in st[name].items():
                d[r] = max(d.get(r, -1000), self.pos - age)
        for r, (age, k, dd) in st["mfma_w"].items():
            cur = self.mfma_w.get(r)
            if cur is None or cur[0] < self.pos - age:
                if cur is not None and cur[2] != dd and self.pos - cur[0] < 32:
                    dd = ()
                self.mfma_w[r] = (self.pos - age, k, dd)
            elif cur[2] != dd:
                self.mfma_w[r] = (cur[0], cur[1], ())
        for r, (age, k) in st["mfma_c"].items():
            cur = self.mfma_c.get(r)
            if cur is None or cur[0] < self.pos - age:
                self.mfma_c[r] = (self.pos - age, k)
        self.m0_w = max(self.m0_w, self.pos - st["m0"])

    def raw(self, text, states=1):
        self.lines.append("    " + text)
        self.pos += states

    def label(self, name):
        self.lines.append(name + ":")

    def comment(self, text):
        self.lines.append("    ; " + text)

    def nop(self, n):
        while n > 0:
            k = min(n, 16)
            self.lines.append("    s_nop %d" % (k - 1))
            self.pos += k
            self.nops += 1
            n -= k

    def lgkm0(self):
        if True:
            self.raw("s_waitcnt lgkmcnt(0)")
        self.ldsq = []

    def _lds_wait(self, regs):
        regs = set(regs)
        idx = -1
        for i, d in enumerate(self.ldsq):
            if d & regs:
                idx = i
        if idx >= 0:
            n = len(self.ldsq) - idx - 1
            n = min(n, 15)
            self.raw("s_waitcnt lgkmcnt(%d)" % n)
            self.ldsq = self.ldsq[len(self.ldsq) - n:] if n > 0 else []

    def ins(self, text, kind, dst=(), src=(), srcC=(), passes=8):
        dst = list(dst)
        src = list(src)
        srcC = list(srcC)
        allregs = dst + src + srcC
        self._lds_wait(allregs)
        need = self.pos
        isvalu = kind in ("valu", "trans", "perm", "rfl")

        def req(p, n):
            nonlocal need
            need = max(need, p + n + 1)

        tab_valu = {8: 12, 4: 8}
        tab_ab = {8: 12, 4: 8}
        tab_c = {8: 10, 4: 6}
        tab_war = {8: 7, 4: 3}
        for r in set(allregs):
            mw = self.mfma_w.get(r)
            if mw is not None:
                p, k, d = mw
                if kind == "mfma":
                    if r in srcC:
                        if tuple(srcC) == d and k == passes:
                            pass
                        else:
                            req(p, tab_c[k])
                    if r in src:
                        req(p, tab_ab[k])
                elif kind != "salu":
                    req(p, tab_valu[k])
        for r in set(src + srcC):
            vw = self.valu_w.get(r)
            if vw is not None:
                if kind == "mfma":
                    req(vw, 2)
                elif kind == "perm":
                    req(vw, 2)
                elif kind == "rfl":
                    req(vw, 1)
            tw = self.trans_w.get(r)
            if tw is not None and kind in ("valu", "perm", "rfl"):
                req(tw, 1)
            sw = self.sgpr_valu_w.get(r)
            if sw is not None:
                if isvalu or kind == "mfma":
                    req(sw, 2)
                elif kind.startswith("vmem"):
                    req(sw, 5)
        if kind == "perm":
            for r in dst:
                vw = self.valu_w.get(r)
                if vw is not None:
                    req(vw, 2)
        for r in dst:
            mc = self.mfma_c.get(r)
            if mc is not None and isvalu:
                req(mc[0], tab_war[mc[1]])
            sd = self.store_d.get(r)
            if sd is not None:
                req(sd, 2)
        if kind == "vmem_dma":
            req(self.m0_w, 1)
        if need > self.pos:
            self.nop(need - self.pos)
        at = self.pos
        self.raw(text)
        self.count[kind] = self.count.get(kind, 0) + 1
        if kind.startswith("vmem"):
            self.vmq.append(self.vmtag)
            self.vm_total += 1
        for r in dst:
            self.valu_w.pop(r, None)
            self.trans_w.pop(r, None)
            self.mfma_w.pop(r, None)
            self.sgpr_valu_w.pop(r, None)
        if isvalu:
            for r in dst:
                if r[0] in "va":
                    self.valu_w[r] = at
                    if kind == "trans":
                        self.trans_w[r] = at
                else:
                    self.sgpr_valu_w[r] = at
        elif kind == "mfma":
            for r in dst:
                self.mfma_w[r] = (at, passes, tuple(dst))
            for r in srcC:
                self.mfma_c[r] = (at, passes)
        elif kind == "ds_r":
            self.ldsq.append(set(dst))
        elif kind == "ds_w":
            self.ldsq.append(set())
        elif kind == "vmem_w":
            for r in src:
                self.store_d[r] = at
        elif kind == "salu":
            if "m0" in dst:
                self.m0_w = at

    @staticmethod
    def _t(x):
        return x[0] if isinstance(x, tuple) else str(x)

    @staticmethod
    def _r(x):
        return x[1] if isinstance(x, tuple) else []

    def valu(self, op, d, *srcs, kind="valu"):
        text = "%s %s, %s" % (op, self._t(d), ", ".join(self._t(s) for s in srcs))
        src = []
        for s in srcs:
            src += self._r(s)
        self.ins(text, kind, dst=self._r(d), src=src)

    def trans(self, op, d, s):
        self.valu(op, d, s, kind="trans")

    def salu(self, op, d, *srcs):
        text = "%s %s, %s" % (op, self._t(d), ", ".join(self._t(s) for s in srcs))
        dd = self._r(d) if isinstance(d, tuple) else ([d] if d == "m0" else [])
        self.ins(text, "salu", dst=dd)

    def mfma(self, d, a, b, c):
        text = "v_mfma_f32_32x32x16_bf16 %s, %s, %s, %s" % (d[0], a[0], b[0], self._t(c))
        self.ins(text, "mfma", dst=d[1], src=a[1] + b[1], srcC=self._r(c), passes=8)

    def ds_read(self, op, d, addr, off):
        assert 0 <= off < 65536, off
        text = "%s %s, %s offset:%d" % (op, d[0], addr[0], off)
        self.ins(text, "ds_r", dst=d[1], src=addr[1])

    def ds_write(self, op, addr, data, off):
        assert 0 <= off < 65536, off
        text = "%s %s, %s offset:%d" % (op, addr[0], data[0], off)
        self.ins(text, "ds_w", src=addr[1] + data[1])

    def buf_load(self, op, d, voff, srd, soff, off, flags=""):
        assert 0 <= off < 4096
        text = "%s %s, %s, %s, %s offen offset:%d%s" % (op, d[0], voff[0], srd[0], self._t(soff), off, (" " + flags) if flags else "")
        self.ins(text, "vmem_r", dst=d[1], src=voff[1] + srd[1] + self._r(soff))

    def buf_dma(self, voff, srd, soff, off, flags=""):
        assert 0 <= off < 4096
        text = "buffer_load_dwordx4 %s, %s, %s offen offset:%d%s lds" % (voff[0], srd[0], self._t(soff), off, (" " + flags) if flags else "")
        self.ins(text, "vmem_dma", src=voff[1] + srd[1] + self._r(soff))

    def buf_store(self, op, data, voff, srd, soff, off, flags=""):
        assert 0 <= off < 4096
        text = "%s %s, %s, %s, %s offen offset:%d%s" % (op, data[0], voff[0], srd[0], self._t(soff), off, (" " + flags) if flags else "")
        self.ins(text, "vmem_w", src=data[1] + voff[1] + srd[1] + self._r(soff))

    def vmcnt(self, n):
        n = min(n, 63)
        self.raw("s_waitcnt vmcnt(%d)" % n)
        self.vmq = self.vmq[len(self.vmq) - n:] if n > 0 else []

    def wait_vm(self, *tags):
        idx = -1
        for i, t in enumerate(self.vmq):
            if t in tags:
                idx = i
        n = len(self.vmq) - idx - 1 if idx >= 0 else 63
        n = min(n, 63)
        self.vm_log.append(n)
        if self.vm_over is not None:
            site = len(self.vm_log) - 1
            steady = self.vm_over[site]
            if getattr(self, "vm_first_sgpr", None) is not None and n < steady:
                self.raw("s_cmp_lg_u32 s%d, 0" % self.vm_first_sgpr)
                self.raw("s_cbranch_scc1 L_vmskip_%d" % site)
                self.raw("s_waitcnt vmcnt(%d)" % n)
                self.label("L_vmskip_%d" % site)
                self.raw("s_waitcnt vmcnt(%d)" % steady)
                if n < len(self.vmq):
                    self.vmq = self.vmq[len(self.vmq) - n:] if n > 0 else []
                return
            n = min(n, steady)
        if idx < 0 and self.vm_over is None:
            pass
        self.raw("s_waitcnt vmcnt(%d)" % n)
        if n < len(self.vmq):
            self.vmq = self.vmq[len(self.vmq) - n:] if n > 0 else []

    def barrier(self):
        assert not self.ldsq, "LDS ops outstanding at barrier"
        self.raw("s_barrier")

    def text(self):
        return "\n".join(self.lines) + "\n"
```

```python
import sys
import struct
import math
import copy
from emit import Emit, V, A, S

NAME = "standalone__mha_block_cached__near_ridge_kernel"

HEADER = """; Kernarg layout for this problem (64 bytes, ptrs only, base s[0:1]):
;     by all workgroups at kernel start) was prefetched into AGPRs / LDS during the key loop.
"""


def f32bits(x):
    return struct.unpack("<I", struct.pack("<f", x))[0]


SCALE = (128 ** -0.5) * math.log2(math.e)
THRESH = 8.0

vKA = 1
vVA = 9
vKD = 13
vVD = 17
vL0, vL1 = 18, 19
vT = 20
vWD = 23
vRA = 24
vCK = 26
vLN = 27
vPF = 0
vPD = 30
vQ = 32
vO = 64
vS = 128
vC = 192
vKF = 208
vVF = 232
NKF = 6
NVF = 6

sK, sV, sX, sWQ, sWS, sWO, sOI, sOUT, sFL, sDBG = 20, 24, 28, 32, 36, 64, 68, 72, 76, 80
sB, sH, sW, sCNT, sKOFF, sVOFF, sM0W, sTMP, sTMP2 = 40, 41, 42, 43, 44, 45, 46, 47, 48
sRHO, sR19, sR7, sPQ, sNT, sROT, sMASK, sTO, sM0WW = 49, 50, 51, 52, 53, 54, 55, 56, 57
sHO = 84
sXCC, sTRY, sTOFF = 58, 96, 97
sWR = 92

LDS_K = 0
LDS_V = 65536
LDS_W = 131072
FLAG_OFF = 0x1000000
STAMP_OFF = 0x4000000
WOF_OFF = 0x2000000


class Opt:
    kf = "nt"
    vf = "nt"
    stamp = 0
    notile = 0
    wof = "sc1"
    dstep = 2
    early67 = 1
    ovl = 1
    deep = 0
    pf = 0
    pff = ""
    xf = ""
    xatt = 0
    cntr = 2
    rotm = 0
    xout = 0
    pro = 2
    sdbg = 0
    stag = 0
    dyn = 1
    wlast = 1
    kstep = 1


class G:
    e = None


def gen(o):
    G.e = Emit()
    e = G.e
    kflag = o.kf.replace("+", " ")
    vflag = o.vf.replace("+", " ")
    woflag = o.wof.replace("+", " ")

    def raw(t):
        G.e.raw(t)

    def stamp(idx):
        if not o.stamp:
            return
        e = G.e
        assert not e.ldsq
        e.raw("s_memrealtime s[60:61]")
        e.raw("s_waitcnt lgkmcnt(0)")
        if isinstance(idx, int):
            e.raw("v_writelane_b32 v31, s60, %d" % idx)
        else:
            e.raw("s_mov_b32 m0, %s" % idx[0])
            e.raw("s_nop 4")
            e.raw("v_writelane_b32 v31, s60, m0")

    raw("s_cmp_ge_u32 s2, 256")
    raw("s_cbranch_scc1 L_done")
    raw("s_load_dwordx16 s[4:19], s[0:1], 0")
    if o.stamp:
        raw("s_memrealtime s[62:63]")
    e.valu("v_lshrrev_b32", V(vT), 6, V(0))
    e.ins("v_readfirstlane_b32 s%d, v%d" % (sW, vT), "rfl", dst=["s%d" % sW], src=["v%d" % vT])
    raw("s_xor_b32 s3, s2, 0x%x" % o.xatt)
    raw("s_and_b32 s%d, s3, 1" % sB)
    raw("s_lshl_b32 s%d, s%d, 2" % (sB, sB))
    raw("s_bfe_u32 s%d, s3, 0x20003" % sTMP)
    raw("s_add_u32 s%d, s%d, s%d" % (sB, sB, sTMP))
    raw("s_bfe_u32 s%d, s3, 0x20001" % sH)
    raw("s_lshl_b32 s%d, s%d, 3" % (sH, sH))
    raw("s_lshr_b32 s%d, s3, 5" % sTMP)
    raw("s_add_u32 s%d, s%d, s%d" % (sH, sH, sTMP))
    raw("s_lshl_b32 s%d, s%d, 1" % (sRHO, sB))
    raw("s_add_u32 s%d, s%d, s%d" % (sRHO, sRHO, sH))
    raw("s_mul_i32 s%d, s2, %d" % (sTOFF, o.stag))
    raw("s_lshr_b32 s%d, s2, 5" % sTMP)
    raw("s_add_u32 s%d, s%d, s%d" % (sTOFF, sTOFF, sTMP) if o.stag else "s_nop 0")
    raw("s_and_b32 s%d, s%d, 31" % (sTOFF, sTOFF))
    raw("s_lshl_b32 s%d, s%d, 14" % (sTOFF, sTOFF))
    tb = vKF
    lane = V(tb)
    t_i4, t_i15, t_hf, t_k31, t_a, t_b, t_r, t_cc, t_ds, t_w16, t_i3, t_p7 = (V(tb + 1 + i) for i in range(12))
    e.valu("v_and_b32", lane, 63, V(0))
    e.valu("v_lshrrev_b32", t_i4, 4, lane)
    e.valu("v_and_b32", t_i15, 15, lane)
    e.valu("v_lshrrev_b32", t_hf, 5, lane)
    e.valu("v_and_b32", t_k31, 31, lane)
    e.valu("v_lshrrev_b32", t_r, 2, t_i15)
    e.valu("v_and_b32", t_cc, 3, lane)
    e.valu("v_and_b32", t_ds, 1, t_i4)
    e.valu("v_lshrrev_b32", t_i3, 3, lane)
    e.valu("v_and_b32", t_p7, 7, lane)
    e.valu("v_lshlrev_b32", V(vLN), 4, lane)
    raw("s_lshl_b32 s%d, s%d, 4" % (sTMP, sW))
    e.valu("v_add_u32", t_w16, S(sTMP), t_i4)
    raw("s_lshl_b32 s%d, s%d, 12" % (sM0W, sW))
    raw("s_lshl_b32 s%d, s%d, 13" % (sM0WW, sW))
    raw("s_add_u32 s%d, s%d, 0x%x" % (sM0WW, sM0WW, LDS_W))
    vWQA = vC
    vWW = vC + 4
    vWQL = vC + 5
    vXL = vC + 6
    vXW = vC + 7
    vXR = vC + 9
    vFZ = vC + 13
    e.valu("v_lshlrev_b32", t_a, 2, t_i4)
    e.valu("v_xor_b32", t_a, t_a, t_i15)
    e.valu("v_lshlrev_b32", t_a, 4, t_a)
    e.valu("v_lshl_add_u32", V(vWQL), t_w16, 13, t_a)
    e.valu("v_lshl_add_u32", V(vVD), t_w16, 8, t_a)
    raw("s_lshl_b32 s%d, s%d, 5" % (sTMP, sW))
    e.valu("v_add_u32", t_b, S(sTMP), t_i3)
    for par in range(2):
        e.valu("v_lshrrev_b32", t_a, 1, t_i3)
        e.valu("v_add_u32", t_a, 4 * par, t_a)
        e.valu("v_xor_b32", t_a, t_a, t_p7)
        e.valu("v_lshlrev_b32", t_a, 4, t_a)
        e.valu("v_lshl_add_u32", V(vXW + par), t_b, 10, t_a)
    raw("s_waitcnt lgkmcnt(0)")
    raw("s_lshl_b32 s%d, s%d, 17" % (sTMP2, sB))
    raw("s_add_u32 s%d, s4, s%d" % (sX, sTMP2))
    raw("s_addc_u32 s%d, s5, 0" % (sX + 1))
    raw("s_mov_b32 s%d, 0x20000" % (sX + 2))
    raw("s_mov_b32 s%d, 0x20000" % (sX + 3))
    raw("s_lshl_b32 s%d, s%d, 8" % (sTMP2, sH))
    raw("s_add_u32 s%d, s10, s%d" % (sWQ, sTMP2))
    raw("s_addc_u32 s%d, s11, 0" % (sWQ + 1))
    raw("s_sub_u32 s%d, 0x400000, s%d" % (sWQ + 2, sTMP2))
    raw("s_mov_b32 s%d, 0x20000" % (sWQ + 3))
    raw("s_add_u32 s%d, s18, 0x%x" % (sFL, FLAG_OFF))
    raw("s_addc_u32 s%d, s19, 0" % (sFL + 1))
    raw("s_mov_b32 s%d, 0x1000" % (sFL + 2))
    raw("s_mov_b32 s%d, 0x20000" % (sFL + 3))
    srdK, srdV, srdX, srdWQ, srdWS, srdWO, srdOI, srdOUT, srdFL, srdDBG = (
        S(x, 4) for x in (sK, sV, sX, sWQ, sWS, sWO, sOI, sOUT, sFL, sDBG))
    raw("s_mov_b32 s%d, s16" % sDBG)
    raw("s_mov_b32 s%d, s17" % (sDBG + 1))
    raw("s_mov_b32 s%d, 256" % (sDBG + 2))
    raw("s_mov_b32 s%d, 0x20000" % (sDBG + 3))
    vSL = V(vT + 1)
    e.valu("v_mov_b32", vSL, 1)
    raw("s_lshl_b32 s%d, s%d, 2" % (sTMP2, sB))
    raw("s_add_u32 s%d, s%d, s%d" % (sTMP2, sTMP2, sW))
    raw("s_lshl_b32 s%d, s%d, 5" % (sTMP2, sTMP2))
    raw("s_add_u32 s%d, s%d, s%d" % (sTMP2, sTMP2, sH))
    raw("s_lshl_b32 s%d, s%d, 2" % (sTMP, sTMP2))
    e.valu("v_mov_b32", V(vFZ), S(sTMP))
    e.valu("v_mov_b32", t_a, 0)
    raw("s_mov_b64 exec, 1")
    e.vmtag = "fz"
    e.buf_store("buffer_store_dword", t_a, V(vFZ), srdFL, 0, 0, "sc1")
    raw("s_mov_b64 exec, -1")
    raw("s_lshl_b32 s%d, s%d, 13" % (sTMP2, sTMP2))
    raw("s_add_u32 s%d, s18, s%d" % (sWS, sTMP2))
    raw("s_addc_u32 s%d, s19, 0" % (sWS + 1))
    raw("s_mov_b32 s%d, 0x2000" % (sWS + 2))
    raw("s_mov_b32 s%d, 0x20000" % (sWS + 3))

    BUF = [(LDS_K, LDS_K + 16384), (LDS_K + 32768, LDS_V), (LDS_K + 49152, LDS_V + 16384),
           (LDS_V + 32768, LDS_V + 49152), (LDS_W + 16384, LDS_W)]
    XWB = [BUF[i] for i in ((0, 1, 2, 3, 4, 2, 3, 4) if o.pro == 0 else (2, 3, 4, 0, 1, 2, 3, 4))]

    def xw_ops(tau):
        wq_base, x_base = XWB[tau]
        ops = []

        def op(kind, j):
            def f():
                e.vmtag = ("xw", tau)
                if kind == "w":
                    if j == 0:
                        raw("s_add_u32 s%d, s%d, %d" % (sTMP, sRHO, tau))
                        raw("s_and_b32 s%d, s%d, 7" % (sTMP, sTMP))
                        raw("s_lshl_b32 s%d, s%d, 7" % (sR7, sTMP))
                    e.salu("s_add_u32", "m0", S(sM0W), wq_base + j * 1024)
                    if j:
                        raw("s_add_u32 s%d, s%d, 0x8000" % (sR19, sR19))
                    else:
                        raw("s_lshl_b32 s%d, s%d, 12" % (sR19, sR7))
                    e.buf_dma(V(vWQL), srdWQ, S(sR19), 0, o.xf.replace('+', ' '))
                else:
                    e.salu("s_add_u32", "m0", S(sM0W), x_base + j * 1024)
                    if j:
                        raw("s_add_u32 s%d, s%d, 0x2000" % (sR7, sR7))
                    e.buf_dma(V(vXW + (j & 1)), srdX, S(sR7), 0, o.xf.replace('+', ' '))
            return f
        return [op("w", j) for j in range(4)] + [op("x", j) for j in range(4)]

    def xw_dma(tau):
        for f in xw_ops(tau):
            f()

    xw_dma(0)
    xw_dma(1)
    vRL = vQ + 16
    raw("s_lshl_b32 s%d, s2, 14" % sTMP)
    raw("s_add_u32 s%d, s12, s%d" % (sWR, sTMP))
    raw("s_addc_u32 s%d, s13, 0" % (sWR + 1))
    raw("s_mov_b32 s%d, 0x4000" % (sWR + 2))
    raw("s_mov_b32 s%d, 0x20000" % (sWR + 3))
    e.vmtag = "wrl"
    e.salu("s_add_u32", "m0", S(sM0W), LDS_K + 32768)
    for j in range(4):
        e.valu("v_xor_b32", V(vRL + j), j << 6, V(vLN))
        e.buf_dma(V(vRL + j), S(sWR, 4), S(sM0W), j * 1024)
    if o.pro == 0:
        xw_dma(2)

    raw("s_lshl_b32 s%d, s%d, 5" % (sTMP, sB))
    raw("s_add_u32 s%d, s%d, s%d" % (sTMP, sTMP, sH))
    raw("s_lshl_b32 s%d, s%d, 19" % (sTMP2, sTMP))
    raw("s_add_u32 s%d, s6, s%d" % (sK, sTMP2))
    raw("s_addc_u32 s%d, s7, 0" % (sK + 1))
    raw("s_mov_b32 s%d, 0x80000" % (sK + 2))
    raw("s_mov_b32 s%d, 0x20000" % (sK + 3))
    raw("s_add_u32 s%d, s8, s%d" % (sV, sTMP2))
    raw("s_addc_u32 s%d, s9, 0" % (sV + 1))
    raw("s_mov_b32 s%d, 0x80000" % (sV + 2))
    raw("s_mov_b32 s%d, 0x20000" % (sV + 3))
    for j in range(4):
        e.valu("v_add_u32", t_a, 4 * j, t_i4)
        e.valu("v_xor_b32", t_a, t_a, t_i15)
        e.valu("v_lshlrev_b32", t_a, 4, t_a)
        e.valu("v_lshl_add_u32", V(vKD + j), t_w16, 8, t_a)

    def kv_ops(kind, slot, soff_reg, t, pre=None, post=None):
        def op(j):
            def f():
                e = G.e
                e.vmtag = (kind, t)
                e.salu("s_add_u32", "m0", S(sM0W), (LDS_K if kind == "K" else LDS_V) + slot * 16384)
                if j == 0 and pre:
                    for p_ in pre:
                        e.raw(p_)
                if kind == "K":
                    e.buf_dma(V(vKD + j), srdK, S(soff_reg), j * 1024, kflag)
                else:
                    e.buf_dma(V(vVD), srdV, S(soff_reg), j * 1024, vflag)
                if j == 3 and post:
                    e.raw(post)
                    if o.stag:
                        e.raw("s_and_b32 s%d, s%d, 0x7ffff" % (soff_reg, soff_reg))
            return f
        return [op(j) for j in range(4)]

    def kv_init_ops(kind, t):
        reg = sKOFF if kind == "K" else sVOFF
        return kv_ops(kind, t % 4, reg, t, pre=(["s_mov_b32 s%d, s%d" % (reg, sTOFF)] if t == 0 else []),
                      post="s_add_u32 s%d, s%d, 0x4000" % (reg, reg))

    def kv_init(kind, t):
        for f in kv_init_ops(kind, t):
            f()

    if o.stamp:
        raw("v_writelane_b32 v31, s62, 0")
    stamp(1)

    for s in range(8):
        e.valu("v_or_b32", t_a, 2 * s, t_hf)
        e.valu("v_xor_b32", t_a, t_a, t_i15)
        e.valu("v_lshlrev_b32", t_a, 4, t_a)
        e.valu("v_lshl_add_u32", V(vKA + s), t_k31, 8, t_a)

    def tr_addr(dst, blk, blkxor, lo_first, hfshift, rowshift, base):
        e.valu("v_xor_b32", t_a, blk, blkxor)
        e.valu("v_lshlrev_b32", t_a, 1, t_a)
        e.valu("v_add_u32", t_a, t_a, t_ds)
        e.valu("v_lshlrev_b32", t_a, 1, t_a)
        if lo_first:
            e.valu("v_lshrrev_b32", t_b, 1, t_cc)
        else:
            e.valu("v_and_b32", t_b, 1, t_cc)
        e.valu("v_add_u32", t_a, t_a, t_b)
        e.valu("v_lshlrev_b32", t_a, 4, t_a)
        if lo_first:
            e.valu("v_and_b32", t_b, 1, t_cc)
        else:
            e.valu("v_lshrrev_b32", t_b, 1, t_cc)
        e.valu("v_lshl_add_u32", t_a, t_b, 3, t_a)
        e.valu("v_lshl_add_u32", t_b, t_hf, hfshift, t_r)
        e.valu("v_lshl_add_u32", t_a, t_b, rowshift, t_a)
        e.valu("v_add_u32", dst, base, t_a)

    for db in range(4):
        tr_addr(V(vVA + db), db, t_r, True, 2, 8, LDS_V)
        tr_addr(V(vWQA + db), db, t_r, False, 3, 8, 0)
    raw("s_lshl_b32 s%d, s%d, 8" % (sTMP, sW))
    raw("s_add_u32 s%d, s%d, 0x%x" % (sTMP, sTMP, LDS_K + 32768))
    for b2 in range(4):
        tr_addr(V(vRL + 4 + b2), b2, t_r, True, 2, 10, S(sTMP))
    e.valu("v_add_u32", V(vRA), S(sM0WW), V(vLN))
    e.valu("v_lshlrev_b32", t_a, 6, lane)
    e.valu("v_add_u32", V(vPF), S(sM0W), t_a)
    raw("s_add_u32 s%d, s%d, 0x%x" % (sTMP, sM0W, LDS_K + 16384))
    for ee in range(4):
        e.valu("v_bfe_u32", t_b, t_k31, 1, 3)
        e.valu("v_or_b32", t_a, 2 * ee, t_hf)
        e.valu("v_xor_b32", t_a, t_a, t_b)
        e.valu("v_lshlrev_b32", t_a, 4, t_a)
        e.valu("v_lshl_add_u32", t_a, t_k31, 7, t_a)
        e.valu("v_add_u32", V(vXR + ee), S(sTMP), t_a)
    vFA, vF = V(29), V(30)
    vFZ2 = 28
    e.valu("v_mov_b32", V(vFZ2), V(vFZ))
    raw("s_xor_b32 s3, s2, 0x%x" % o.xout)
    raw("s_and_b32 s%d, s3, 7" % sTMP2)
    raw("s_lshl_b32 s%d, s%d, 5" % (sTMP2, sTMP2))
    raw("s_lshr_b32 s%d, s3, 3" % sTMP)
    raw("s_add_u32 s%d, s%d, s%d" % (sTMP2, sTMP2, sTMP))
    raw("s_bfe_u32 s%d, s%d, 0x20005" % (sPQ, sTMP2))
    raw("s_lshl_b32 s%d, s%d, 3" % (sPQ, sPQ))
    raw("s_and_b32 s%d, s%d, 7" % (sTMP, sTMP2))
    raw("s_add_u32 s%d, s%d, s%d" % (sPQ, sPQ, sTMP))
    raw("s_bfe_u32 s%d, s%d, 0x10007" % (sNT, sTMP2))
    raw("s_lshl_b32 s%d, s%d, 2" % (sNT, sNT))
    raw("s_bfe_u32 s%d, s%d, 0x20003" % (sTMP, sTMP2))
    raw("s_add_u32 s%d, s%d, s%d" % (sNT, sNT, sTMP))
    if o.rotm == 1:
        raw("s_mov_b32 s%d, 0" % sROT)
    elif o.rotm == 2:
        raw("s_xor_b32 s%d, s%d, 3" % (sTMP, sTMP))
        raw("s_lshl_b32 s%d, s%d, 1" % (sROT, sTMP))
    else:
        raw("s_lshl_b32 s%d, s%d, 1" % (sROT, sTMP))
    for j in range(8):
        raw("s_add_u32 s%d, s%d, %d" % (sTMP, sROT, j))
        raw("s_and_b32 s%d, s%d, 7" % (sTMP, sTMP))
        raw("s_lshl_b32 s%d, s%d, 14" % (sHO + j, sTMP))
    raw("s_lshl_b32 s%d, s%d, 17" % (sTMP, sW))
    raw("s_lshl_b32 s%d, s%d, 19" % (sTMP2, sNT))
    raw("s_add_u32 s%d, s%d, s%d" % (sTMP, sTMP, sTMP2))
    raw("s_add_u32 s%d, s%d, 0x%x" % (sTMP, sTMP, WOF_OFF))
    raw("s_add_u32 s%d, s18, s%d" % (sWO, sTMP))
    raw("s_addc_u32 s%d, s19, 0" % (sWO + 1))
    raw("s_mov_b32 s%d, 0x20000" % (sWO + 2))
    raw("s_mov_b32 s%d, 0x20000" % (sWO + 3))
    raw("s_lshl_b32 s%d, s%d, 7" % (sTMP2, sNT))
    raw("s_lshl_b32 s%d, s%d, 15" % (sTMP, sPQ))
    raw("s_add_u32 s%d, s%d, s%d" % (sTMP, sTMP, sTMP2))
    raw("s_add_u32 s%d, s14, s%d" % (sOUT, sTMP))
    raw("s_addc_u32 s%d, s15, 0" % (sOUT + 1))
    raw("s_sub_u32 s%d, 0x8000, s%d" % (sOUT + 2, sTMP2))
    raw("s_mov_b32 s%d, 0x20000" % (sOUT + 3))
    raw("s_lshl_b32 s%d, s%d, 18" % (sTMP, sPQ))
    raw("s_lshl_b32 s%d, s%d, 16" % (sTMP2, sW))
    raw("s_add_u32 s%d, s%d, s%d" % (sTMP, sTMP, sTMP2))
    raw("s_add_u32 s%d, s18, s%d" % (sOI, sTMP))
    raw("s_addc_u32 s%d, s19, 0" % (sOI + 1))
    raw("s_mov_b32 s%d, 0x10000" % (sOI + 2))
    raw("s_mov_b32 s%d, 0x20000" % (sOI + 3))

    e.valu("v_lshrrev_b32", vFA, 4, V(vLN))
    e.valu("v_add_u32", vFA, S(sROT), vFA)
    e.valu("v_and_b32", vFA, 7, vFA)
    raw("s_lshl_b32 s%d, s%d, 5" % (sTMP, sPQ))
    raw("s_lshl_b32 s%d, s%d, 3" % (sTMP2, sW))
    raw("s_add_u32 s%d, s%d, s%d" % (sTMP, sTMP, sTMP2))
    e.valu("v_add_u32", vFA, S(sTMP), vFA)
    e.valu("v_lshlrev_b32", vFA, 2, vFA)


    NQ = 12
    vQF = vS
    vXF = vKF + 16
    vWQB = vS + 48
    vXRB = vS + 52
    for db in range(4):
        e.valu("v_add_u32", V(vWQB + db), LDS_V + 32768, V(vWQA + db))
        e.valu("v_add_u32", V(vXRB + db), LDS_V, V(vXR + db))

    def xread(tau):
        base = XWB[tau][1] - 16384
        for ee in range(4):
            addr, off = (V(vXR + ee), base) if base < 65536 else (V(vXRB + ee), base - LDS_V)
            e.ds_read("ds_read_b128", V(vXF + 16 * (tau & 1) + 4 * ee, 4), addr, off)

    def qidx(tau, i):
        if tau == 7:
            db, ee = divmod(i, 4)
        else:
            ee, db = divmod(i, 4)
        return ee, db

    def qrd(tau, i):
        ee, db = qidx(tau, i)
        fr = vQF + 4 * ((16 * tau + i) % NQ)
        base = XWB[tau][0]
        addr, off = (V(vWQA + db), base) if base < 65536 else (V(vWQB + db), base - (LDS_V + 32768))
        for u in range(2):
            e.ds_read("ds_read_b64_tr_b16", V(fr + 2 * u, 2), addr, off + (16 * ee + 4 * u) * 256)

    def qmf(tau, i):
        ee, db = qidx(tau, i)
        fr = vQF + 4 * ((16 * tau + i) % NQ)
        first = (tau == 0 and ee == 0)
        e.mfma(V(vO + 16 * db, 16), V(fr, 4), V(vXF + 16 * (tau & 1) + 4 * ee, 4),
               0 if first else V(vO + 16 * db, 16))

    e.wait_vm(("xw", 0))
    e.barrier()
    stamp(46)
    xread(0)
    for i in range(8):
        qrd(0, i)
    raw("s_lshl_b32 s%d, s%d, 20" % (sTMP, sW))
    raw("s_lshl_b32 s%d, s2, 11" % sTMP2)
    raw("s_add_u32 s%d, s%d, s%d" % (sTMP, sTMP, sTMP2))
    raw("s_add_u32 s%d, s%d, 0x%x" % (sTMP, sTMP, WOF_OFF))
    raw("s_add_u32 s%d, s18, s%d" % (sWR, sTMP))
    raw("s_addc_u32 s%d, s19, 0" % (sWR + 1))
    raw("s_mov_b32 s%d, 0x80800" % (sWR + 2))
    raw("s_mov_b32 s%d, 0x80000" % sXCC)

    def wrl_store(b2):
        e.vmtag = "wst"
        e.buf_store("buffer_store_dwordx4", V(vQ + 4 * b2, 4), V(vLN), S(sWR, 4), S(sXCC) if b2 >> 1 else 0,
                    (b2 & 1) * 1024, "sc1")
    KVS = {1: [("K", 0), ("K", 1)], 2: [("V", 0), ("K", 2)], 6: [("V", 1), ("K", 3)], 7: [("V", 2)]}
    XWS = {0: [3, 4], 3: [5], 4: [6], 5: [7]}
    if o.pro == 1:
        KVS = {4: [("K", 0), ("K", 1)], 5: [("V", 0), ("K", 2)], 6: [("V", 1), ("K", 3)], 7: [("V", 2)]}
        XWS = {0: [2, 3], 1: [4, 5], 2: [6], 3: [7]}
    late_kv = []
    if o.pro == 2:
        KVS = {4: [("K", 0), ("K", 1)], 5: [("V", 0)], 6: [("K", 2)]}
        XWS = {0: [2, 3], 1: [5], 2: [4, 6], 3: [7]}
        late_kv = [("V", 1), ("K", 3), ("V", 2)]
    if o.pro == 3:
        KVS = {4: [("K", 0)], 5: [("K", 1)], 6: [("V", 0)]}
        XWS = {0: [2, 3], 1: [4, 5], 2: [6], 3: [7]}
        late_kv = [("K", 2), ("V", 1), ("K", 3), ("V", 2)]
    for tau in range(7):
        dq = []
        for t in XWS.get(tau, []):
            dq += xw_ops(t)
        if tau == 1:
            dq = dq[:4] + [lambda b2=b2: wrl_store(b2) for b2 in range(4)] + dq[4:]
        for kind, t in KVS.get(tau, []):
            dq += kv_init_ops(kind, t)
        if o.pf and tau >= 6:
            lst = [("V", 1), ("K", 3), ("V", 2)] + [x for d in range(o.pf) for x in (("K", 4 + d), ("V", 3 + d))]
            half = (len(lst) + 1) // 2
            for kind, t in (lst[:half] if tau == 6 else lst[half:]):
                def f(kind=kind, t=t):
                    e.vmtag = "pf"
                    raw("s_add_u32 s%d, s%d, 0x%x" % (sTMP, sTOFF, t * 16384))
                    e.buf_load("buffer_load_dword", V(vPD), V(vPF), srdK if kind == "K" else srdV, S(sTMP), 0, o.pff)
                dq.append(f)
        pos = [int((k + 0.5) * 12 / max(len(dq), 1)) for k in range(len(dq))]
        for i in range(12):
            qmf(tau, i)
            if i < 8:
                qrd(tau, i + 8)
            while dq and pos[0] <= i:
                pos.pop(0)
                dq.pop(0)()
        assert not dq
        if tau < 7:
            e.wait_vm(("xw", tau + 1), *([("K", 0)] if tau == 6 else ["wrl"] if tau == 0 else ["wst"] if tau == o.cntr - 1 else []))
            e.lgkm0()
            e.barrier()
            if o.stamp > 1:
                stamp(53 + tau)
            xread(tau + 1)
            for i in range(8):
                qrd(tau + 1, i)
            if tau == o.cntr - 1:
                raw("s_cmp_lg_u32 s%d, 0" % sW)
                raw("s_cbranch_scc1 L_noclaim")
                raw("v_mov_b32 v%d, 0" % vT)
                raw("s_mov_b64 exec, 1")
                raw("buffer_atomic_add %s, v%d, s[%d:%d], 0 offen sc1" % (vSL[0], vT, sDBG, sDBG + 3))
                raw("s_mov_b64 exec, -1")
                e.label("L_noclaim")
            if tau == 0:
                for b2 in range(4):
                    for u in range(2):
                        e.ds_read("ds_read_b64_tr_b16", V(vQ + 4 * b2 + 2 * u, 2), V(vRL + 4 + b2), u * 8192)
        for i in range(12, 16):
            qmf(tau, i)
    def kread(slot, i):
        kb, s = divmod(i, 8)
        G.e.ds_read("ds_read_b128", V(vKF + 4 * (i % NKF), 4), V(vKA + s), LDS_K + slot * 16384 + kb * 8192)

    PVORD = {"dbmajor": False}

    def pv_index(j):
        if PVORD["dbmajor"]:
            db, ks = divmod(j, 4)
        else:
            ks, db = divmod(j, 4)
        return ks, db

    def vread(slot, j):
        ks, db = pv_index(j)
        fr = vVF + 4 * (j % NVF)
        for u in range(2):
            G.e.ds_read("ds_read_b64_tr_b16", V(fr + 2 * u, 2), V(vVA + db), slot * 16384 + (16 * ks + 8 * u) * 256)

    def qk_mfma(sb, i, cinit):
        kb, s = divmod(i, 8)
        d = V(sb + 16 * kb, 16)
        c = d if s > 0 else cinit
        G.e.mfma(d, V(vKF + 4 * (i % NKF), 4), V(vQ + 4 * s, 4), c)

    def pv_mfma(sb, j):
        ks, db = pv_index(j)
        p = V(sb + 8 * ks, 4)
        d = V(vO + 16 * db, 16)
        G.e.mfma(d, V(vVF + 4 * (j % NVF), 4), p, d)

    def softmax_ops(sb, ks):
        b = sb + 8 * ks
        ex = lambda i: (2, lambda: G.e.trans("v_exp_f32", V(b + i), V(b + i)))
        ad = lambda i: (1, lambda: G.e.valu("v_add_f32", V(vL0 + (i & 1)), V(vL0 + (i & 1)), V(b + i)))
        cv = lambda k: (1, lambda: G.e.valu("v_cvt_pk_bf16_f32", V(b + k), V(b + 2 * k), V(b + 2 * k + 1)))
        return [ex(0), ex(1), ex(2), ex(3), ad(0), ad(1), ex(4), ad(2), ex(5), ad(3), cv(0), ex(6), ad(4),
                ex(7), ad(5), cv(1), ad(6), ad(7), cv(2), cv(3)]

    vM = V(vT)

    def max_ops(sb, half):
        ops = []
        b = sb + 16 * half
        if half == 0:
            ops.append((1, lambda: G.e.valu("v_max3_f32", vM, V(b), V(b + 1), V(b + 2))))
            for k in range(3, 15, 2):
                ops.append((1, lambda k=k: G.e.valu("v_max3_f32", vM, vM, V(b + k), V(b + k + 1))))
            ops.append((1, lambda: G.e.valu("v_max_f32", vM, vM, V(b + 15))))
        else:
            for k in range(0, 16, 2):
                ops.append((1, lambda k=k: G.e.valu("v_max3_f32", vM, vM, V(b + k), V(b + k + 1))))
        return ops

    def full_max():
        e = G.e
        t = V(vT + 1)
        e.valu("v_mov_b32", t, vM)
        e.ins("v_permlane32_swap_b32 %s, %s" % (vM[0], t[0]), "perm", dst=vM[1] + t[1], src=vM[1] + t[1])
        e.valu("v_max_f32", vM, vM, t)

    rare = []

    def gen_rare(lbl, ret, sb):
        e = G.e
        e.label(lbl)
        e.nop(16)
        full_max()
        e.valu("v_max_f32", vM, 0, vM)
        f = V(vT + 2)
        e.ins("v_exp_f32 %s, -%s" % (f[0], vM[0]), "trans", dst=f[1], src=vM[1])
        for i in range(32):
            e.valu("v_sub_f32", V(sb + i), V(sb + i), vM)
        for i in range(16):
            e.valu("v_sub_f32", V(vC + i), V(vC + i), vM)
        for i in range(64):
            e.valu("v_mul_f32", V(vO + i), V(vO + i), f)
        e.valu("v_mul_f32", V(vL0), V(vL0), f)
        e.valu("v_mul_f32", V(vL1), V(vL1), f)
        e.nop(4)
        e.raw("s_branch %s" % ret)

    def wo_ops(m0base_sgpr, m0_imm, soff_sgpr, off, n, tag):
        def op(i):
            def f():
                e = G.e
                e.vmtag = tag
                e.salu("s_add_u32", "m0", S(m0base_sgpr), m0_imm + (i & ~3) * 1024)
                e.raw("s_add_u32 s%d, s%d, 0x%x" % (sTMP, soff_sgpr, off + (i & ~3) * 1024))
                e.buf_dma(V(vLN), srdWO, S(sTMP), (i & 3) * 1024, woflag)
            return f
        return [op(i) for i in range(n)]

    def wo_step_reads(step):
        e = G.e
        for f in range(8):
            e.ds_read("ds_read_b128", A(32 * step + 4 * f, 4), V(vRA), f * 1024)

    QREG = [LDS_K + 0, LDS_K + 16384, LDS_V + 0, LDS_K + 32768, LDS_V + 16384, LDS_K + 49152, LDS_V + 32768, None]

    def quarter_ops(q, jbase, tag):
        j = jbase + (q >> 2)
        if QREG[q] is None:
            return wo_ops(sM0WW, 4096 if jbase == 6 else 0, sHO + j, 4096 * (q & 3), 4, tag)
        return wo_ops(sM0W, QREG[q], sHO + j, 4096 * (q & 3), 4, tag)

    def quarter_dma(q, jbase, tag):
        for f in quarter_ops(q, jbase, tag):
            f()

    def final_l():
        e = G.e
        l = V(vL0)
        t = V(vT + 1)
        e.valu("v_add_f32", l, l, V(vL1))
        e.valu("v_mov_b32", t, l)
        e.ins("v_permlane32_swap_b32 %s, %s" % (l[0], t[0]), "perm", dst=l[1] + t[1], src=l[1] + t[1])
        e.valu("v_add_f32", l, l, t)
        e.trans("v_rcp_f32", l, l)
        e.valu("v_add_u32", V(vT + 2), 4096, V(vLN))

    def pack_store(sg):
        e = G.e
        l = V(vL0)
        e.vmtag = "Ost"
        base = vO + 8 * sg
        for k in range(8):
            e.valu("v_mul_f32", V(base + k), V(base + k), l)
        fr = vQ + 4 * sg
        for k in range(4):
            e.valu("v_cvt_pk_bf16_f32", V(fr + k), V(base + 2 * k), V(base + 2 * k + 1))
        e.buf_store("buffer_store_dwordx4", V(fr, 4), V(vLN) if sg < 4 else V(vT + 2), srdWS, 0, (sg & 3) * 1024, "sc1")

    def touch_ops(dk, dv):
        def op(kind, d):
            def f():
                e = G.e
                e.vmtag = "pf"
                e.raw("s_add_u32 s%d, s%d, 0x%x" % (sTMP, sKOFF if kind == "K" else sVOFF, d * 16384))
                e.buf_load("buffer_load_dword", V(vPD), V(vPF), srdK if kind == "K" else srdV, S(sTMP), 0, o.pff)
            return f
        return [op("K", dk), op("V", dv)]

    def tile(t, mode, uid):
        e = G.e
        t4 = t % 4
        do_k = t + 4 <= 31
        do_v = t + 3 <= 31
        do_qk = t + 1 <= 31
        cur = vS + 32 * (t4 & 1)
        nxt = vS + 32 * ((t4 + 1) & 1)
        kslot = (t4 + 1) % 4
        vslot = t4 % 4
        vq = []
        marks = {}
        for ks in range(4):
            vq += softmax_ops(cur, ks)
            marks[ks] = len(vq)
        state = {"i": 0}

        def run_upto(n):
            while state["i"] < n:
                vq[state["i"]][1]()
                state["i"] += 1

        def run_budget(budget, lst, st):
            while st["i"] < len(lst) and budget > 0:
                c, fn = lst[st["i"]]
                fn()
                st["i"] += 1
                budget -= c

        if t == 31:
            run_upto(len(vq))
            if o.ovl:
                PVORD["dbmajor"] = True
                final_l()
        if o.stamp:
            e.raw("s_add_u32 s59, s59, 1")
        tags = [("K", t + 1), ("V", t)]
        if t4 == 2 and t > 2:
            tags.append(("W", t // 4 - 1))
        if t == 2:
            tags.append("cnt")
        e.wait_vm(*tags)
        e.barrier()
        if not o.notile:
            stamp(S(59))
        if t4 == 2:
            if mode == "loop":
                e.ins("v_readfirstlane_b32 s%d, v%d" % (sTMP, vCK), "rfl", dst=["s%d" % sTMP], src=["v%d" % vCK])
                e.raw("s_cmp_lt_u32 s%d, 256" % sTMP)
                e.raw("s_cbranch_scc1 L_cnt")
                e.label("L_cnt_ok")
                for k in range(6):
                    e.raw("s_cmp_eq_u32 s%d, %d" % (sCNT, k + 1))
                    e.raw("s_cbranch_scc1 L_wrd_%d" % k)
                e.label("L_wrd_ret")
            else:
                wo_step_reads(6)
                e.ldsq = []
        if t == 31:
            e.vmtag = "poll"
            e.buf_load("buffer_load_dword", vF, vFA, srdFL, 0, 0, "sc1")
        if do_qk:
            for i in range(NKF):
                kread(kslot, i)
        dq = []
        if t4 == 2:
            if mode == "loop":
                e.raw("s_lshr_b32 s%d, s%d, 1" % (sTMP2, sCNT))
                e.raw("s_add_u32 s%d, s%d, s%d" % (sTMP2, sTMP2, sROT))
                e.raw("s_and_b32 s%d, s%d, 7" % (sTMP2, sTMP2))
                e.raw("s_lshl_b32 s%d, s%d, 1" % (sTMP2, sTMP2))
                e.raw("s_and_b32 s%d, s%d, 1" % (sTMP, sCNT))
                e.raw("s_add_u32 s%d, s%d, s%d" % (sTMP2, sTMP2, sTMP))
                e.raw("s_lshl_b32 s%d, s%d, 13" % (sTMP2, sTMP2))
                dq += wo_ops(sM0WW, 0, sTMP2, 0, 8, ("W", t // 4))
            else:
                dq += wo_ops(sM0WW, 0, sHO + 3, 8192, 8, ("W", 7))
        kq = []
        if do_k:
            kq += kv_ops("K", t4 % 4, sKOFF, t + 4, post="s_add_u32 s%d, s%d, 0x4000" % (sKOFF, sKOFF))
        if do_v:
            kq += kv_ops("V", (t4 + 3) % 4, sVOFF, t + 3, post="s_add_u32 s%d, s%d, 0x4000" % (sVOFF, sVOFF))
        if o.pf and mode == "loop":
            kq += touch_ops(o.pf - 1, o.pf - 1)
        if o.wlast:
            dq = kq + dq
        else:
            dq = dq + kq
        if mode == "tail":
            qs = {28: [0], 29: [1, 2], 30: [3, 4], 31: [5, 6]}[t]
            for q in qs:
                dq += quarter_ops(q, 4, "Q45")

        nkv = len(kq) if o.wlast else 0
        gcount = {"g": 0}

        def dma_next(force=False):
            g = gcount["g"]
            gcount["g"] += 1
            if not dq:
                return
            issued_kv = len(kq) - min(len(kq), max(0, nkv - (total_dq - len(dq))))
            in_kv = (total_dq - len(dq)) < nkv
            if force or (in_kv and g % o.kstep == 0) or (not in_kv and g % o.dstep == 0):
                dq.pop(0)()
        total_dq = len(dq)
        mq0 = max_ops(nxt, 0) if do_qk else []
        mq1 = max_ops(nxt, 1) if do_qk else []
        ms0, ms1 = {"i": 0}, {"i": 0}
        if do_qk:
            run_budget(8, vq, state)
            for g in range(16):
                qk_mfma(nxt, g, V(vC, 16))
                if g + NKF < 16:
                    kread(kslot, g + NKF)
                if 6 <= g < 6 + NVF:
                    vread(vslot, g - 6)
                dma_next()
                run_budget(4, vq, state)
                if g >= 11:
                    run_budget(2, mq0, ms0)
        else:
            for j in range(NVF):
                vread(vslot, j)
        for j in range(16):
            ks = j // 4
            run_upto(marks[ks])
            pv_mfma(cur, j)
            if j + NVF < 16:
                vread(vslot, j + NVF)
            dma_next(force=not do_qk)
            if t == 31 and o.ovl and j >= 7 and j % 2 == 1:
                pack_store((j - 7) // 2)
            run_budget(4, vq, state)
            if do_qk:
                run_budget(99, mq0, ms0)
                if j >= 10:
                    run_budget(2, mq1, ms1)
        assert state["i"] == len(vq)
        assert not dq
        if do_qk:
            run_budget(99, mq1, ms1)
            e.ins("v_cmp_lt_f32 vcc, 0x%x, %s" % (f32bits(THRESH), vM[0]), "valu", dst=["vcc"], src=vM[1])
            lbl, ret = "L_rare_%s" % uid, "L_ret_%s" % uid
            e.raw("s_cbranch_vccnz %s" % lbl)
            e.label(ret)
            rare.append((lbl, ret, nxt))
        assert not e.ldsq

    raw("s_mov_b32 s%d, 0x%x" % (sTRY, f32bits(SCALE)))

    def pack_ops(db):
        ops = []
        for r in range(0, 16, 2):
            a_, b_ = V(vO + 16 * db + r), V(vO + 16 * db + r + 1)
            ops.append(lambda a_=a_: e.valu("v_mul_f32", a_, S(sTRY), a_))
            ops.append(lambda b_=b_: e.valu("v_mul_f32", b_, S(sTRY), b_))
            ops.append(lambda a_=a_, b_=b_, r=r: e.valu("v_cvt_pk_bf16_f32", V(vQ + 8 * db + r // 2), a_, b_))
        return ops

    def zero_ops(db):
        return [lambda i=i: e.valu("v_mov_b32", V(vO + 16 * db + i), 0) for i in range(16)]

    e.valu("v_mov_b32", V(vCK), 0)
    raw("s_mov_b32 s%d, 0x20000" % sTO)
    pq_ = []
    for i in range(16):
        qmf(7, i)
        if i < 8:
            qrd(7, i + 8)
        if i >= 10:
            kread(0, i - 10)
        if i % 4 == 1 and i > 4:
            pq_ += pack_ops(i // 4 - 1)
        for _ in range(6):
            if pq_:
                pq_.pop(0)()
    lq = []
    for kind, t in late_kv:
        lq += kv_init_ops(kind, t)
    pq_ += zero_ops(0) + zero_ops(1)
    for g in range(16):
        if g == 6:
            while pq_ and npack3["left"] > 0:
                pq_.pop(0)()
                npack3["left"] -= 1
        qk_mfma(vS, g, 0)
        if g + NKF < 16:
            kread(0, g + NKF)
        if lq:
            lq.pop(0)()
        if g == 1:
            p3 = pack_ops(3)
            npack3 = {"left": len(pq_) + len(p3)}
            pq_ += p3 + zero_ops(2) + zero_ops(3)
        for _ in range(7):
            if pq_:
                pq_.pop(0)()
                if g >= 1:
                    npack3["left"] -= 1
    while pq_:
        pq_.pop(0)()
    e.valu("v_mov_b32", V(vL0), 0)
    e.valu("v_mov_b32", V(vL1), 0)
    stamp(2)
    for c, fn in max_ops(vS, 0) + max_ops(vS, 1):
        fn()
    full_max()
    for i in range(32):
        e.valu("v_sub_f32", V(vS + i), V(vS + i), vM)
    for i in range(16):
        e.valu("v_sub_f32", V(vC + i), 0, vM)

    e.vmtag = "cnt"
    e.buf_load("buffer_load_dword", V(vCK), V(vCK), srdDBG, 0, 0, "sc1")
    raw("s_mov_b32 s%d, 0" % sCNT)
    stamp(3)
    if o.stamp:
        raw("s_memtime s[60:61]")
        raw("s_waitcnt lgkmcnt(0)")
        raw("v_writelane_b32 v31, s60, 6")
        raw("s_mov_b32 s59, 7")

    def body(p):
        G.e.label("L_loop")
        for t4 in range(4):
            tile(4 * p + t4, "loop", "m%d" % t4)
        G.e.raw("s_add_u32 s%d, s%d, 1" % (sCNT, sCNT))
        G.e.raw("s_cmp_lt_u32 s%d, 7" % sCNT)
        G.e.raw("s_cbranch_scc1 L_loop")

    real = G.e
    sim = copy.deepcopy(real)
    G.e = sim
    logs = []
    backs = []
    for p in range(7):
        sim.vm_log = []
        body(p)
        logs.append(list(sim.vm_log))
        backs.append(sim.snapshot())
    over = [min(l[i] for l in logs[1:]) for i in range(len(logs[0]))]
    sys.stderr.write("loop vmcnt sites: %s\n" % logs)
    G.e = real
    e = real
    rare.clear()
    e.merge(backs[0])
    e.merge(backs[-1])
    e.vm_log = []
    e.vm_over = over
    e.vm_first_sgpr = sCNT
    body(0)
    e.vm_over = None
    e.vmq = list(sim.vmq)
    for t in range(28, 32):
        tile(t, "tail", "t%d" % t)
    stamp(4)
    if o.stamp:
        raw("s_memtime s[60:61]")
        raw("s_waitcnt lgkmcnt(0)")
        raw("v_writelane_b32 v31, s60, 7")

    if not o.ovl:
        final_l()
    for sg in range(5 if o.ovl else 0, 8):
        pack_store(sg)
    vQA = 1
    e.valu("v_add_u32", V(vQA), S(sM0W), V(vLN))
    e.valu("v_add_u32", V(vQA + 1), LDS_V, V(vQA))

    def quarter_reads(q, dstfn, wup=0):
        for f in range(4):
            off = f * 1024
            if QREG[q] is None:
                addr, off = V(vRA), off + wup
            elif QREG[q] < LDS_V:
                addr, off = V(vQA), off + QREG[q]
            else:
                addr, off = V(vQA + 1), off + QREG[q] - LDS_V
            e.ds_read("ds_read_b128", dstfn(16 * q + 4 * f), addr, off)

    vW45 = 128
    vAcc = vQ
    vOB = vO

    def need_flag(j, sfx=""):
        raw("s_bitcmp1_b32 s%d, %d" % (sMASK, j))
        raw("s_cbranch_scc1 L_ok_%d" % j)
        e.label("L_spin_%d" % j)
        raw("buffer_load_dword %s, %s, s[%d:%d], 0 offen sc1" % (vF[0], vFA[0], sFL, sFL + 3))
        raw("s_waitcnt vmcnt(0)")
        raw("v_cmp_ne_u32 vcc, 0, %s" % vF[0])
        raw("s_nop 1")
        raw("s_mov_b32 s%d, vcc_lo" % sMASK)
        raw("s_bitcmp1_b32 s%d, %d" % (sMASK, j))
        raw("s_cbranch_scc1 L_ok_%d" % j)
        raw("s_sleep 1")
        raw("s_sub_u32 s%d, s%d, 1" % (sTO, sTO))
        raw("s_cmp_lg_u32 s%d, 0" % sTO)
        raw("s_cbranch_scc1 L_spin_%d" % j)
        raw("s_branch L_done")
        e.label("L_ok_%d" % j)

    def obuf(j, sg):
        if o.deep and j in (3, 7):
            return A(4 * sg, 4)
        if o.deep and j == 5:
            return A(32 + 4 * sg, 4)
        if o.deep:
            return V(vOB + (32 if j in (1, 4) else 0) + 4 * sg, 4)
        return V(vOB + 32 * (j & 1) + 4 * sg, 4)

    def o_loads(j, check=True):
        if check:
            need_flag(j)
        e.vmtag = ("O", j)
        raw("s_lshr_b32 s%d, s%d, 1" % (sR7, sHO + j))
        raw("s_add_u32 s%d, s%d, 0x1000" % (sR19, sR7))
        for sg in range(8):
            e.buf_load("buffer_load_dwordx4", obuf(j, sg), V(vLN), srdOI,
                       S(sR7 if sg < 4 else sR19), (sg & 3) * 1024, "sc1")

    def q45_reads():
        wo_step_reads(7)
        for q in range(7):
            quarter_reads(q, lambda r: V(vW45 + r, 4))

    def flag_store():
        e.wait_vm("Ost")
        e.valu("v_mov_b32", V(vT), 1)
        raw("s_mov_b64 exec, 1")
        e.vmtag = "flag"
        e.buf_store("buffer_store_dword", V(vT), V(vFZ2), srdFL, 0, 0, "sc1")
        raw("s_mov_b64 exec, -1")

    def wfrag(j, sg, nb):
        if j < 4:
            return A(64 * j + 8 * sg + 4 * nb, 4)
        if j < 6:
            return V(vW45 + 64 * (j - 4) + 8 * sg + 4 * nb, 4)
        return A(64 * (j - 6) + 8 * sg + 4 * nb, 4)

    e.wait_vm("Q45", "poll", ("W", 7))
    raw("v_cmp_ne_u32 vcc, 0, %s" % vF[0])
    raw("s_nop 1")
    raw("s_mov_b32 s%d, vcc_lo" % sMASK)
    raw("s_and_b32 s%d, s%d, 3" % (sTMP, sMASK))
    raw("s_cmp_eq_u32 s%d, 3" % sTMP)
    raw("s_cbranch_scc0 L_slow")
    fork = copy.deepcopy(e)
    o_loads(0, False)
    o_loads(1, False)
    q45_reads()
    flag_store()
    e.lgkm0()
    raw("s_mov_b32 s%d, 0" % sTRY)
    raw("s_branch L_join")
    fast_lines = e.lines
    fork.lines = fast_lines
    G.e = e = fork
    e.label("L_slow")
    q45_reads()
    flag_store()
    e.lgkm0()
    if o.early67:
        vq_save, vt_save = list(e.vmq), e.vm_total
        quarter_dma(7, 4, "Q67e")
        for q in range(8):
            quarter_dma(q, 6, "Q67e")
        e.vmq, e.vm_total = vq_save, vt_save
        raw("s_mov_b32 s%d, 1" % sTRY)
    o_loads(0)
    o_loads(1)
    e.label("L_join")
    e.nop(2)
    stamp(50)
    dq = quarter_ops(7, 4, "Q67")
    for q in range(8):
        dq += quarter_ops(q, 6, "Q67")
    for j in range(0 if o.deep else 8):
        e.wait_vm(("O", j))
        if j == 0:
            stamp(51)
        for sg in range(8):
            for nb in range(2):
                d = V(vAcc + 16 * nb, 16)
                e.mfma(d, wfrag(j, sg, nb), V(vOB + 32 * (j & 1) + 4 * sg, 4), 0 if (j == 0 and sg == 0) else d)
                if dq and (nb == 0 or j > 0):
                    if o.early67:
                        lbl = "L_sk67_%d" % len(dq)
                        raw("s_cmp_eq_u32 s%d, 1" % sTRY)
                        raw("s_cbranch_scc1 %s" % lbl)
                        vq_save, vt_save = list(e.vmq), e.vm_total
                        dq.pop(0)()
                        e.vmq, e.vm_total = vq_save, vt_save
                        q67_mark = e.vm_total
                        e.label(lbl)
                    else:
                        dq.pop(0)()
        if j + 2 < 8:
            o_loads(j + 2)
        if j == 3:
            assert not dq
            if o.early67:
                raw("s_waitcnt vmcnt(%d)" % (e.vm_total - q67_mark))
            else:
                e.wait_vm("Q67")
            quarter_reads(7, lambda r: V(vW45 + r, 4))
            for q in range(8):
                quarter_reads(q, lambda r: A(r, 4), wup=4096)
    stamp(52)
    wa = V(7)
    e.valu("v_add_u32", wa, S(sM0WW), V(vLN))
    for q in range(8):
        e.ds_write("ds_write_b128", wa, V(vAcc + 4 * q, 4), q * 1024)
    e.lgkm0()
    e.barrier()
    raw("s_lshl_b32 s%d, s%d, 11" % (sTMP, sW))
    raw("s_add_u32 s%d, s%d, 0x%x" % (sTMP, sTMP, LDS_W))
    ra = V(8)
    e.valu("v_add_u32", ra, S(sTMP), V(vLN))
    for k in range(2):
        for ww in range(4):
            e.ds_read("ds_read_b128", V(64 + 16 * k + 4 * ww, 4), ra, ww * 8192 + k * 1024)
    oa = V(9)
    e.valu("v_bfe_u32", oa, V(vLN), 4, 5)
    e.valu("v_lshlrev_b32", oa, 10, oa)
    e.valu("v_lshrrev_b32", V(10), 9, V(vLN))
    e.valu("v_lshl_add_u32", oa, V(10), 3, oa)
    raw("s_lshl_b32 s%d, s%d, 5" % (sTMP, sW))
    e.valu("v_add_u32", oa, S(sTMP), oa)
    for k in range(2):
        b = 64 + 16 * k
        for c in range(4):
            e.valu("v_add_f32", V(b + c), V(b + c), V(b + 4 + c))
            e.valu("v_add_f32", V(b + 8 + c), V(b + 8 + c), V(b + 12 + c))
            e.valu("v_add_f32", V(b + c), V(b + c), V(b + 8 + c))
        e.valu("v_cvt_pk_bf16_f32", V(12 + 2 * k), V(b), V(b + 1))
        e.valu("v_cvt_pk_bf16_f32", V(13 + 2 * k), V(b + 2), V(b + 3))
        e.buf_store("buffer_store_dwordx2", V(12 + 2 * k, 2), oa, srdOUT, 0, 16 * k)
    if o.stamp:
        e.vmcnt(0)
        stamp(5)
        if o.sdbg:
            for i, idx in enumerate([0, 1, 46, 2, 3, 16, 24, 32, 4, 50, 51, 52, 5]):
                raw("v_readlane_b32 s47, v31, %d" % idx)
                raw("s_nop 3")
                raw("v_writelane_b32 v29, s47, %d" % (1 + i))
            raw("v_readlane_b32 s47, v31, 0")
            raw("s_nop 3")
            raw("s_not_b32 s47, s47")
            raw("v_writelane_b32 v29, s47, 15")
            raw("v_readlane_b32 s47, v31, 4")
            raw("s_nop 3")
            raw("s_not_b32 s47, s47")
            raw("v_writelane_b32 v29, s47, 14")
            e.valu("v_lshrrev_b32", V(30), 2, V(vLN))
            raw("s_mov_b64 exec, 0xfffe")
            raw("buffer_atomic_umax v29, v30, s[%d:%d], 0 offen sc1" % (sDBG, sDBG + 3))
            raw("s_mov_b64 exec, -1")
            raw("s_branch L_done")
        raw("s_lshl_b32 s47, s2, 2")
        raw("s_add_u32 s47, s47, s%d" % sW)
        raw("s_lshl_b32 s47, s47, 8")
        raw("s_add_u32 s47, s47, 0x%x" % STAMP_OFF)
        raw("s_add_u32 s92, s18, s47")
        raw("s_addc_u32 s93, s19, 0")
        raw("s_mov_b32 s94, 256")
        raw("s_mov_b32 s95, 0x20000")
        e.valu("v_lshrrev_b32", V(30), 2, V(vLN))
        e.buf_store("buffer_store_dword", V(31), V(30), S(92, 4), 0, 0)
    e.label("L_done")
    raw("s_endpgm")
    for lbl, ret, sb in rare:
        gen_rare(lbl, ret, sb)
    e.label("L_cnt")
    raw("s_sleep 8")
    raw("v_mov_b32 v%d, 0" % vCK)
    raw("buffer_load_dword v%d, v%d, s[%d:%d], 0 offen sc1" % (vCK, vCK, sDBG, sDBG + 3))
    raw("s_waitcnt vmcnt(0)")
    raw("v_readfirstlane_b32 s%d, v%d" % (sTMP, vCK))
    raw("s_cmp_ge_u32 s%d, 256" % sTMP)
    raw("s_cbranch_scc1 L_cnt_ok")
    raw("s_sub_u32 s%d, s%d, 1" % (sTO, sTO))
    raw("s_cmp_lg_u32 s%d, 0" % sTO)
    raw("s_cbranch_scc1 L_cnt")
    raw("s_branch L_done")
    for k in range(6):
        e.label("L_wrd_%d" % k)
        wo_step_reads(k)
        e.ldsq = []
        raw("s_branch L_wrd_ret")
    return e


def build(o):
    a = gen(o)
    out = HEADER
    out += "; @launch grid=(256,1,1) block=(256,1,1) lds=163840\n"
    out += '.amdgcn_target "amdgcn-amd-amdhsa--gfx950"\n.text\n'
    out += ".globl %s\n.p2align 8\n.type %s,@function\n%s:\n" % (NAME, NAME, NAME)
    out += a.text()
    out += '.section .rodata,"a"\n'
    out += """.p2align 6
.amdhsa_kernel %s
  .amdhsa_next_free_vgpr 512
  .amdhsa_next_free_sgpr 100
  .amdhsa_accum_offset 256
  .amdhsa_group_segment_fixed_size 0
  .amdhsa_kernarg_size 64
  .amdhsa_user_sgpr_count 2
  .amdhsa_user_sgpr_kernarg_segment_ptr 1
  .amdhsa_system_sgpr_workgroup_id_x 1
.end_amdhsa_kernel
""" % NAME
    sys.stderr.write("%s nops=%d\n" % (a.count, a.nops))
    return out


if __name__ == "__main__":
    o = Opt()
    for arg in sys.argv[2:]:
        k, v = arg.split("=")
        setattr(o, k, v if k in ("kf", "vf", "wof", "pff", "xf") else int(v))
    open(sys.argv[1], "w").write(build(o))
```

```python
import sys
import struct
import math
import copy
from emit import Emit, V, A, S

NAME = "standalone__mha_block_cached__near_ridge_kernel"

HEADER = """; Kernarg layout for this problem (64 bytes, ptrs only, base s[0:1]):
;     by all workgroups at kernel start) was prefetched into AGPRs / LDS during the key loop.
"""


def f32bits(x):
    return struct.unpack("<I", struct.pack("<f", x))[0]


SCALE = (128 ** -0.5) * math.log2(math.e)
THRESH = 8.0

vKA = 1
vVA = 9
vKD = 13
vVD = 17
vL0, vL1 = 18, 19
vT = 20
vWD = 23
vRA = 24
vCK = 26
vLN = 27
vPF = 0
vPD = 30
vQ = 32
vO = 64
vS = 128
vC = 192
vKF = 208
vVF = 232
NKF = 6
NVF = 6

sK, sV, sX, sWQ, sWS, sWO, sOI, sOUT, sFL, sDBG = 20, 24, 28, 32, 36, 64, 68, 72, 76, 80
sB, sH, sW, sCNT, sKOFF, sVOFF, sM0W, sTMP, sTMP2 = 40, 41, 42, 43, 44, 45, 46, 47, 48
sRHO, sR19, sR7, sPQ, sNT, sROT, sMASK, sTO, sM0WW = 49, 50, 51, 52, 53, 54, 55, 56, 57
sHO = 84
sXCC, sTRY, sTOFF = 58, 96, 97
sWR = 92

LDS_K = 0
LDS_V = 65536
LDS_W = 131072
FLAG_OFF = 0x1000000
STAMP_OFF = 0x4000000
WOF_OFF = 0x2000000


class Opt:
    kf = "nt"
    vf = "nt"
    stamp = 0
    notile = 0
    wof = "sc1"
    dstep = 2
    early67 = 1
    ovl = 1
    deep = 0
    pf = 0
    pff = ""
    xf = ""
    xatt = 0
    rfix = 1
    cntr = 2
    rotm = 0
    xout = 0
    pro = 2
    sdbg = 0
    stag = 0
    dyn = 1
    wlast = 1
    kstep = 1


class G:
    e = None


def gen(o):
    G.e = Emit()
    e = G.e
    kflag = o.kf.replace("+", " ")
    vflag = o.vf.replace("+", " ")
    woflag = o.wof.replace("+", " ")

    def raw(t):
        G.e.raw(t)

    def stamp(idx):
        if not o.stamp:
            return
        e = G.e
        assert not e.ldsq
        e.raw("s_memrealtime s[60:61]")
        e.raw("s_waitcnt lgkmcnt(0)")
        if isinstance(idx, int):
            e.raw("v_writelane_b32 v31, s60, %d" % idx)
        else:
            e.raw("s_mov_b32 m0, %s" % idx[0])
            e.raw("s_nop 4")
            e.raw("v_writelane_b32 v31, s60, m0")

    raw("s_cmp_ge_u32 s2, 256")
    raw("s_cbranch_scc1 L_done")
    raw("s_load_dwordx16 s[4:19], s[0:1], 0")
    if o.stamp:
        raw("s_memrealtime s[62:63]")
    e.valu("v_lshrrev_b32", V(vT), 6, V(0))
    e.ins("v_readfirstlane_b32 s%d, v%d" % (sW, vT), "rfl", dst=["s%d" % sW], src=["v%d" % vT])
    raw("s_xor_b32 s3, s2, 0x%x" % o.xatt)
    raw("s_and_b32 s%d, s3, 1" % sB)
    raw("s_lshl_b32 s%d, s%d, 2" % (sB, sB))
    raw("s_bfe_u32 s%d, s3, 0x20003" % sTMP)
    raw("s_add_u32 s%d, s%d, s%d" % (sB, sB, sTMP))
    raw("s_bfe_u32 s%d, s3, 0x20001" % sH)
    raw("s_lshl_b32 s%d, s%d, 3" % (sH, sH))
    raw("s_lshr_b32 s%d, s3, 5" % sTMP)
    raw("s_add_u32 s%d, s%d, s%d" % (sH, sH, sTMP))
    raw("s_lshl_b32 s%d, s%d, 1" % (sRHO, sB))
    raw("s_add_u32 s%d, s%d, s%d" % (sRHO, sRHO, sH))
    if o.rfix >= 2:
        raw("s_lshr_b32 s%d, s%d, 1" % (sTMP, sRHO))
        raw("s_xor_b32 s%d, s%d, s%d" % (sRHO, sRHO, sTMP))
        raw("s_and_b32 s%d, s%d, %d" % (sRHO, sRHO, 1 if o.rfix == 2 else 3))
        raw("s_add_u32 s%d, s%d, 4" % (sRHO, sRHO))
    elif o.rfix:
        raw("s_and_b32 s%d, s%d, 6" % (sTMP, sRHO))
        raw("s_cmp_eq_u32 s%d, 2" % sTMP)
        raw("s_cselect_b32 s%d, 2, 0" % sTMP)
        raw("s_add_u32 s%d, s%d, s%d" % (sRHO, sRHO, sTMP))
    raw("s_mul_i32 s%d, s2, %d" % (sTOFF, o.stag))
    raw("s_lshr_b32 s%d, s2, 5" % sTMP)
    raw("s_add_u32 s%d, s%d, s%d" % (sTOFF, sTOFF, sTMP) if o.stag else "s_nop 0")
    raw("s_and_b32 s%d, s%d, 31" % (sTOFF, sTOFF))
    raw("s_lshl_b32 s%d, s%d, 14" % (sTOFF, sTOFF))
    tb = vKF
    lane = V(tb)
    t_i4, t_i15, t_hf, t_k31, t_a, t_b, t_r, t_cc, t_ds, t_w16, t_i3, t_p7 = (V(tb + 1 + i) for i in range(12))
    e.valu("v_and_b32", lane, 63, V(0))
    e.valu("v_lshrrev_b32", t_i4, 4, lane)
    e.valu("v_and_b32", t_i15, 15, lane)
    e.valu("v_lshrrev_b32", t_hf, 5, lane)
    e.valu("v_and_b32", t_k31, 31, lane)
    e.valu("v_lshrrev_b32", t_r, 2, t_i15)
    e.valu("v_and_b32", t_cc, 3, lane)
    e.valu("v_and_b32", t_ds, 1, t_i4)
    e.valu("v_lshrrev_b32", t_i3, 3, lane)
    e.valu("v_and_b32", t_p7, 7, lane)
    e.valu("v_lshlrev_b32", V(vLN), 4, lane)
    raw("s_lshl_b32 s%d, s%d, 4" % (sTMP, sW))
    e.valu("v_add_u32", t_w16, S(sTMP), t_i4)
    raw("s_lshl_b32 s%d, s%d, 12" % (sM0W, sW))
    raw("s_lshl_b32 s%d, s%d, 13" % (sM0WW, sW))
    raw("s_add_u32 s%d, s%d, 0x%x" % (sM0WW, sM0WW, LDS_W))
    vWQA = vC
    vWW = vC + 4
    vWQL = vC + 5
    vXL = vC + 6
    vXW = vC + 7
    vXR = vC + 9
    vFZ = vC + 13
    e.valu("v_lshlrev_b32", t_a, 2, t_i4)
    e.valu("v_xor_b32", t_a, t_a, t_i15)
    e.valu("v_lshlrev_b32", t_a, 4, t_a)
    e.valu("v_lshl_add_u32", V(vWQL), t_w16, 13, t_a)
    e.valu("v_lshl_add_u32", V(vVD), t_w16, 8, t_a)
    raw("s_lshl_b32 s%d, s%d, 5" % (sTMP, sW))
    e.valu("v_add_u32", t_b, S(sTMP), t_i3)
    for par in range(2):
        e.valu("v_lshrrev_b32", t_a, 1, t_i3)
        e.valu("v_add_u32", t_a, 4 * par, t_a)
        e.valu("v_xor_b32", t_a, t_a, t_p7)
        e.valu("v_lshlrev_b32", t_a, 4, t_a)
        e.valu("v_lshl_add_u32", V(vXW + par), t_b, 10, t_a)
    raw("s_waitcnt lgkmcnt(0)")
    raw("s_lshl_b32 s%d, s%d, 17" % (sTMP2, sB))
    raw("s_add_u32 s%d, s4, s%d" % (sX, sTMP2))
    raw("s_addc_u32 s%d, s5, 0" % (sX + 1))
    raw("s_mov_b32 s%d, 0x20000" % (sX + 2))
    raw("s_mov_b32 s%d, 0x20000" % (sX + 3))
    raw("s_lshl_b32 s%d, s%d, 8" % (sTMP2, sH))
    raw("s_add_u32 s%d, s10, s%d" % (sWQ, sTMP2))
    raw("s_addc_u32 s%d, s11, 0" % (sWQ + 1))
    raw("s_sub_u32 s%d, 0x400000, s%d" % (sWQ + 2, sTMP2))
    raw("s_mov_b32 s%d, 0x20000" % (sWQ + 3))
    raw("s_add_u32 s%d, s18, 0x%x" % (sFL, FLAG_OFF))
    raw("s_addc_u32 s%d, s19, 0" % (sFL + 1))
    raw("s_mov_b32 s%d, 0x1000" % (sFL + 2))
    raw("s_mov_b32 s%d, 0x20000" % (sFL + 3))
    srdK, srdV, srdX, srdWQ, srdWS, srdWO, srdOI, srdOUT, srdFL, srdDBG = (
        S(x, 4) for x in (sK, sV, sX, sWQ, sWS, sWO, sOI, sOUT, sFL, sDBG))
    raw("s_mov_b32 s%d, s16" % sDBG)
    raw("s_mov_b32 s%d, s17" % (sDBG + 1))
    raw("s_mov_b32 s%d, 256" % (sDBG + 2))
    raw("s_mov_b32 s%d, 0x20000" % (sDBG + 3))
    vSL = V(vT + 1)
    e.valu("v_mov_b32", vSL, 1)
    raw("s_lshl_b32 s%d, s%d, 2" % (sTMP2, sB))
    raw("s_add_u32 s%d, s%d, s%d" % (sTMP2, sTMP2, sW))
    raw("s_lshl_b32 s%d, s%d, 5" % (sTMP2, sTMP2))
    raw("s_add_u32 s%d, s%d, s%d" % (sTMP2, sTMP2, sH))
    raw("s_lshl_b32 s%d, s%d, 2" % (sTMP, sTMP2))
    e.valu("v_mov_b32", V(vFZ), S(sTMP))
    e.valu("v_mov_b32", t_a, 0)
    raw("s_mov_b64 exec, 1")
    e.vmtag = "fz"
    e.buf_store("buffer_store_dword", t_a, V(vFZ), srdFL, 0, 0, "sc1")
    raw("s_mov_b64 exec, -1")
    raw("s_lshl_b32 s%d, s%d, 13" % (sTMP2, sTMP2))
    raw("s_add_u32 s%d, s18, s%d" % (sWS, sTMP2))
    raw("s_addc_u32 s%d, s19, 0" % (sWS + 1))
    raw("s_mov_b32 s%d, 0x2000" % (sWS + 2))
    raw("s_mov_b32 s%d, 0x20000" % (sWS + 3))

    BUF = [(LDS_K, LDS_K + 16384), (LDS_K + 32768, LDS_V), (LDS_K + 49152, LDS_V + 16384),
           (LDS_V + 32768, LDS_V + 49152), (LDS_W + 16384, LDS_W)]
    XWB = [BUF[i] for i in ((0, 1, 2, 3, 4, 2, 3, 4) if o.pro == 0 else (2, 3, 4, 0, 1, 2, 3, 4))]

    def xw_ops(tau):
        wq_base, x_base = XWB[tau]
        ops = []

        def op(kind, j):
            def f():
                e.vmtag = ("xw", tau)
                if kind == "w":
                    if j == 0:
                        raw("s_add_u32 s%d, s%d, %d" % (sTMP, sRHO, tau))
                        raw("s_and_b32 s%d, s%d, 7" % (sTMP, sTMP))
                        raw("s_lshl_b32 s%d, s%d, 7" % (sR7, sTMP))
                    e.salu("s_add_u32", "m0", S(sM0W), wq_base + j * 1024)
                    if j:
                        raw("s_add_u32 s%d, s%d, 0x8000" % (sR19, sR19))
                    else:
                        raw("s_lshl_b32 s%d, s%d, 12" % (sR19, sR7))
                    e.buf_dma(V(vWQL), srdWQ, S(sR19), 0, o.xf.replace('+', ' '))
                else:
                    e.salu("s_add_u32", "m0", S(sM0W), x_base + j * 1024)
                    if j:
                        raw("s_add_u32 s%d, s%d, 0x2000" % (sR7, sR7))
                    e.buf_dma(V(vXW + (j & 1)), srdX, S(sR7), 0, o.xf.replace('+', ' '))
            return f
        return [op("w", j) for j in range(4)] + [op("x", j) for j in range(4)]

    def xw_dma(tau):
        for f in xw_ops(tau):
            f()

    xw_dma(0)
    xw_dma(1)
    vRL = vQ + 16
    raw("s_lshl_b32 s%d, s2, 14" % sTMP)
    raw("s_add_u32 s%d, s12, s%d" % (sWR, sTMP))
    raw("s_addc_u32 s%d, s13, 0" % (sWR + 1))
    raw("s_mov_b32 s%d, 0x4000" % (sWR + 2))
    raw("s_mov_b32 s%d, 0x20000" % (sWR + 3))
    e.vmtag = "wrl"
    e.salu("s_add_u32", "m0", S(sM0W), LDS_K + 32768)
    for j in range(4):
        e.valu("v_xor_b32", V(vRL + j), j << 6, V(vLN))
        e.buf_dma(V(vRL + j), S(sWR, 4), S(sM0W), j * 1024)
    if o.pro == 0:
        xw_dma(2)

    raw("s_lshl_b32 s%d, s%d, 5" % (sTMP, sB))
    raw("s_add_u32 s%d, s%d, s%d" % (sTMP, sTMP, sH))
    raw("s_lshl_b32 s%d, s%d, 19" % (sTMP2, sTMP))
    raw("s_add_u32 s%d, s6, s%d" % (sK, sTMP2))
    raw("s_addc_u32 s%d, s7, 0" % (sK + 1))
    raw("s_mov_b32 s%d, 0x80000" % (sK + 2))
    raw("s_mov_b32 s%d, 0x20000" % (sK + 3))
    raw("s_add_u32 s%d, s8, s%d" % (sV, sTMP2))
    raw("s_addc_u32 s%d, s9, 0" % (sV + 1))
    raw("s_mov_b32 s%d, 0x80000" % (sV + 2))
    raw("s_mov_b32 s%d, 0x20000" % (sV + 3))
    for j in range(4):
        e.valu("v_add_u32", t_a, 4 * j, t_i4)
        e.valu("v_xor_b32", t_a, t_a, t_i15)
        e.valu("v_lshlrev_b32", t_a, 4, t_a)
        e.valu("v_lshl_add_u32", V(vKD + j), t_w16, 8, t_a)

    def kv_ops(kind, slot, soff_reg, t, pre=None, post=None):
        def op(j):
            def f():
                e = G.e
                e.vmtag = (kind, t)
                e.salu("s_add_u32", "m0", S(sM0W), (LDS_K if kind == "K" else LDS_V) + slot * 16384)
                if j == 0 and pre:
                    for p_ in pre:
                        e.raw(p_)
                if kind == "K":
                    e.buf_dma(V(vKD + j), srdK, S(soff_reg), j * 1024, kflag)
                else:
                    e.buf_dma(V(vVD), srdV, S(soff_reg), j * 1024, vflag)
                if j == 3 and post:
                    e.raw(post)
                    if o.stag:
                        e.raw("s_and_b32 s%d, s%d, 0x7ffff" % (soff_reg, soff_reg))
            return f
        return [op(j) for j in range(4)]

    def kv_init_ops(kind, t):
        reg = sKOFF if kind == "K" else sVOFF
        return kv_ops(kind, t % 4, reg, t, pre=(["s_mov_b32 s%d, s%d" % (reg, sTOFF)] if t == 0 else []),
                      post="s_add_u32 s%d, s%d, 0x4000" % (reg, reg))

    def kv_init(kind, t):
        for f in kv_init_ops(kind, t):
            f()

    if o.stamp:
        raw("v_writelane_b32 v31, s62, 0")
    stamp(1)

    for s in range(8):
        e.valu("v_or_b32", t_a, 2 * s, t_hf)
        e.valu("v_xor_b32", t_a, t_a, t_i15)
        e.valu("v_lshlrev_b32", t_a, 4, t_a)
        e.valu("v_lshl_add_u32", V(vKA + s), t_k31, 8, t_a)

    def tr_addr(dst, blk, blkxor, lo_first, hfshift, rowshift, base):
        e.valu("v_xor_b32", t_a, blk, blkxor)
        e.valu("v_lshlrev_b32", t_a, 1, t_a)
        e.valu("v_add_u32", t_a, t_a, t_ds)
        e.valu("v_lshlrev_b32", t_a, 1, t_a)
        if lo_first:
            e.valu("v_lshrrev_b32", t_b, 1, t_cc)
        else:
            e.valu("v_and_b32", t_b, 1, t_cc)
        e.valu("v_add_u32", t_a, t_a, t_b)
        e.valu("v_lshlrev_b32", t_a, 4, t_a)
        if lo_first:
            e.valu("v_and_b32", t_b, 1, t_cc)
        else:
            e.valu("v_lshrrev_b32", t_b, 1, t_cc)
        e.valu("v_lshl_add_u32", t_a, t_b, 3, t_a)
        e.valu("v_lshl_add_u32", t_b, t_hf, hfshift, t_r)
        e.valu("v_lshl_add_u32", t_a, t_b, rowshift, t_a)
        e.valu("v_add_u32", dst, base, t_a)

    for db in range(4):
        tr_addr(V(vVA + db), db, t_r, True, 2, 8, LDS_V)
        tr_addr(V(vWQA + db), db, t_r, False, 3, 8, 0)
    raw("s_lshl_b32 s%d, s%d, 8" % (sTMP, sW))
    raw("s_add_u32 s%d, s%d, 0x%x" % (sTMP, sTMP, LDS_K + 32768))
    for b2 in range(4):
        tr_addr(V(vRL + 4 + b2), b2, t_r, True, 2, 10, S(sTMP))
    e.valu("v_add_u32", V(vRA), S(sM0WW), V(vLN))
    e.valu("v_lshlrev_b32", t_a, 6, lane)
    e.valu("v_add_u32", V(vPF), S(sM0W), t_a)
    raw("s_add_u32 s%d, s%d, 0x%x" % (sTMP, sM0W, LDS_K + 16384))
    for ee in range(4):
        e.valu("v_bfe_u32", t_b, t_k31, 1, 3)
        e.valu("v_or_b32", t_a, 2 * ee, t_hf)
        e.valu("v_xor_b32", t_a, t_a, t_b)
        e.valu("v_lshlrev_b32", t_a, 4, t_a)
        e.valu("v_lshl_add_u32", t_a, t_k31, 7, t_a)
        e.valu("v_add_u32", V(vXR + ee), S(sTMP), t_a)
    vFA, vF = V(29), V(30)
    vFZ2 = 28
    e.valu("v_mov_b32", V(vFZ2), V(vFZ))
    raw("s_xor_b32 s3, s2, 0x%x" % o.xout)
    raw("s_and_b32 s%d, s3, 7" % sTMP2)
    raw("s_lshl_b32 s%d, s%d, 5" % (sTMP2, sTMP2))
    raw("s_lshr_b32 s%d, s3, 3" % sTMP)
    raw("s_add_u32 s%d, s%d, s%d" % (sTMP2, sTMP2, sTMP))
    raw("s_bfe_u32 s%d, s%d, 0x20005" % (sPQ, sTMP2))
    raw("s_lshl_b32 s%d, s%d, 3" % (sPQ, sPQ))
    raw("s_and_b32 s%d, s%d, 7" % (sTMP, sTMP2))
    raw("s_add_u32 s%d, s%d, s%d" % (sPQ, sPQ, sTMP))
    raw("s_bfe_u32 s%d, s%d, 0x10007" % (sNT, sTMP2))
    raw("s_lshl_b32 s%d, s%d, 2" % (sNT, sNT))
    raw("s_bfe_u32 s%d, s%d, 0x20003" % (sTMP, sTMP2))
    raw("s_add_u32 s%d, s%d, s%d" % (sNT, sNT, sTMP))
    if o.rotm == 1:
        raw("s_mov_b32 s%d, 0" % sROT)
    elif o.rotm == 2:
        raw("s_xor_b32 s%d, s%d, 3" % (sTMP, sTMP))
        raw("s_lshl_b32 s%d, s%d, 1" % (sROT, sTMP))
    else:
        raw("s_lshl_b32 s%d, s%d, 1" % (sROT, sTMP))
    for j in range(8):
        raw("s_add_u32 s%d, s%d, %d" % (sTMP, sROT, j))
        raw("s_and_b32 s%d, s%d, 7" % (sTMP, sTMP))
        raw("s_lshl_b32 s%d, s%d, 14" % (sHO + j, sTMP))
    raw("s_lshl_b32 s%d, s%d, 17" % (sTMP, sW))
    raw("s_lshl_b32 s%d, s%d, 19" % (sTMP2, sNT))
    raw("s_add_u32 s%d, s%d, s%d" % (sTMP, sTMP, sTMP2))
    raw("s_add_u32 s%d, s%d, 0x%x" % (sTMP, sTMP, WOF_OFF))
    raw("s_add_u32 s%d, s18, s%d" % (sWO, sTMP))
    raw("s_addc_u32 s%d, s19, 0" % (sWO + 1))
    raw("s_mov_b32 s%d, 0x20000" % (sWO + 2))
    raw("s_mov_b32 s%d, 0x20000" % (sWO + 3))
    raw("s_lshl_b32 s%d, s%d, 7" % (sTMP2, sNT))
    raw("s_lshl_b32 s%d, s%d, 15" % (sTMP, sPQ))
    raw("s_add_u32 s%d, s%d, s%d" % (sTMP, sTMP, sTMP2))
    raw("s_add_u32 s%d, s14, s%d" % (sOUT, sTMP))
    raw("s_addc_u32 s%d, s15, 0" % (sOUT + 1))
    raw("s_sub_u32 s%d, 0x8000, s%d" % (sOUT + 2, sTMP2))
    raw("s_mov_b32 s%d, 0x20000" % (sOUT + 3))
    raw("s_lshl_b32 s%d, s%d, 18" % (sTMP, sPQ))
    raw("s_lshl_b32 s%d, s%d, 16" % (sTMP2, sW))
    raw("s_add_u32 s%d, s%d, s%d" % (sTMP, sTMP, sTMP2))
    raw("s_add_u32 s%d, s18, s%d" % (sOI, sTMP))
    raw("s_addc_u32 s%d, s19, 0" % (sOI + 1))
    raw("s_mov_b32 s%d, 0x10000" % (sOI + 2))
    raw("s_mov_b32 s%d, 0x20000" % (sOI + 3))

    e.valu("v_lshrrev_b32", vFA, 4, V(vLN))
    e.valu("v_add_u32", vFA, S(sROT), vFA)
    e.valu("v_and_b32", vFA, 7, vFA)
    raw("s_lshl_b32 s%d, s%d, 5" % (sTMP, sPQ))
    raw("s_lshl_b32 s%d, s%d, 3" % (sTMP2, sW))
    raw("s_add_u32 s%d, s%d, s%d" % (sTMP, sTMP, sTMP2))
    e.valu("v_add_u32", vFA, S(sTMP), vFA)
    e.valu("v_lshlrev_b32", vFA, 2, vFA)


    NQ = 12
    vQF = vS
    vXF = vKF + 16
    vWQB = vS + 48
    vXRB = vS + 52
    for db in range(4):
        e.valu("v_add_u32", V(vWQB + db), LDS_V + 32768, V(vWQA + db))
        e.valu("v_add_u32", V(vXRB + db), LDS_V, V(vXR + db))

    def xread(tau):
        base = XWB[tau][1] - 16384
        for ee in range(4):
            addr, off = (V(vXR + ee), base) if base < 65536 else (V(vXRB + ee), base - LDS_V)
            e.ds_read("ds_read_b128", V(vXF + 16 * (tau & 1) + 4 * ee, 4), addr, off)

    def qidx(tau, i):
        if tau == 7:
            db, ee = divmod(i, 4)
        else:
            ee, db = divmod(i, 4)
        return ee, db

    def qrd(tau, i):
        ee, db = qidx(tau, i)
        fr = vQF + 4 * ((16 * tau + i) % NQ)
        base = XWB[tau][0]
        addr, off = (V(vWQA + db), base) if base < 65536 else (V(vWQB + db), base - (LDS_V + 32768))
        for u in range(2):
            e.ds_read("ds_read_b64_tr_b16", V(fr + 2 * u, 2), addr, off + (16 * ee + 4 * u) * 256)

    def qmf(tau, i):
        ee, db = qidx(tau, i)
        fr = vQF + 4 * ((16 * tau + i) % NQ)
        first = (tau == 0 and ee == 0)
        e.mfma(V(vO + 16 * db, 16), V(fr, 4), V(vXF + 16 * (tau & 1) + 4 * ee, 4),
               0 if first else V(vO + 16 * db, 16))

    e.wait_vm(("xw", 0))
    e.barrier()
    stamp(46)
    xread(0)
    for i in range(8):
        qrd(0, i)
    raw("s_lshl_b32 s%d, s%d, 20" % (sTMP, sW))
    raw("s_lshl_b32 s%d, s2, 11" % sTMP2)
    raw("s_add_u32 s%d, s%d, s%d" % (sTMP, sTMP, sTMP2))
    raw("s_add_u32 s%d, s%d, 0x%x" % (sTMP, sTMP, WOF_OFF))
    raw("s_add_u32 s%d, s18, s%d" % (sWR, sTMP))
    raw("s_addc_u32 s%d, s19, 0" % (sWR + 1))
    raw("s_mov_b32 s%d, 0x80800" % (sWR + 2))
    raw("s_mov_b32 s%d, 0x80000" % sXCC)

    def wrl_store(b2):
        e.vmtag = "wst"
        e.buf_store("buffer_store_dwordx4", V(vQ + 4 * b2, 4), V(vLN), S(sWR, 4), S(sXCC) if b2 >> 1 else 0,
                    (b2 & 1) * 1024, "sc1")
    KVS = {1: [("K", 0), ("K", 1)], 2: [("V", 0), ("K", 2)], 6: [("V", 1), ("K", 3)], 7: [("V", 2)]}
    XWS = {0: [3, 4], 3: [5], 4: [6], 5: [7]}
    if o.pro == 1:
        KVS = {4: [("K", 0), ("K", 1)], 5: [("V", 0), ("K", 2)], 6: [("V", 1), ("K", 3)], 7: [("V", 2)]}
        XWS = {0: [2, 3], 1: [4, 5], 2: [6], 3: [7]}
    late_kv = []
    if o.pro == 2:
        KVS = {4: [("K", 0), ("K", 1)], 5: [("V", 0)], 6: [("K", 2)]}
        XWS = {0: [2, 3], 1: [5], 2: [4, 6], 3: [7]}
        late_kv = [("V", 1), ("K", 3), ("V", 2)]
    if o.pro == 3:
        KVS = {4: [("K", 0)], 5: [("K", 1)], 6: [("V", 0)]}
        XWS = {0: [2, 3], 1: [4, 5], 2: [6], 3: [7]}
        late_kv = [("K", 2), ("V", 1), ("K", 3), ("V", 2)]
    for tau in range(7):
        dq = []
        for t in XWS.get(tau, []):
            dq += xw_ops(t)
        if tau == 1:
            dq = dq[:4] + [lambda b2=b2: wrl_store(b2) for b2 in range(4)] + dq[4:]
        for kind, t in KVS.get(tau, []):
            dq += kv_init_ops(kind, t)
        if o.pf and tau >= 6:
            lst = [("V", 1), ("K", 3), ("V", 2)] + [x for d in range(o.pf) for x in (("K", 4 + d), ("V", 3 + d))]
            half = (len(lst) + 1) // 2
            for kind, t in (lst[:half] if tau == 6 else lst[half:]):
                def f(kind=kind, t=t):
                    e.vmtag = "pf"
                    raw("s_add_u32 s%d, s%d, 0x%x" % (sTMP, sTOFF, t * 16384))
                    e.buf_load("buffer_load_dword", V(vPD), V(vPF), srdK if kind == "K" else srdV, S(sTMP), 0, o.pff)
                dq.append(f)
        pos = [int((k + 0.5) * 12 / max(len(dq), 1)) for k in range(len(dq))]
        for i in range(12):
            qmf(tau, i)
            if i < 8:
                qrd(tau, i + 8)
            while dq and pos[0] <= i:
                pos.pop(0)
                dq.pop(0)()
        assert not dq
        if tau < 7:
            e.wait_vm(("xw", tau + 1), *([("K", 0)] if tau == 6 else ["wrl"] if tau == 0 else ["wst"] if tau == o.cntr - 1 else []))
            e.lgkm0()
            e.barrier()
            if o.stamp > 1:
                stamp(53 + tau)
            xread(tau + 1)
            for i in range(8):
                qrd(tau + 1, i)
            if tau == o.cntr - 1:
                raw("s_cmp_lg_u32 s%d, 0" % sW)
                raw("s_cbranch_scc1 L_noclaim")
                raw("v_mov_b32 v%d, 0" % vT)
                raw("s_mov_b64 exec, 1")
                raw("buffer_atomic_add %s, v%d, s[%d:%d], 0 offen sc1" % (vSL[0], vT, sDBG, sDBG + 3))
                raw("s_mov_b64 exec, -1")
                e.label("L_noclaim")
            if tau == 0:
                for b2 in range(4):
                    for u in range(2):
                        e.ds_read("ds_read_b64_tr_b16", V(vQ + 4 * b2 + 2 * u, 2), V(vRL + 4 + b2), u * 8192)
        for i in range(12, 16):
            qmf(tau, i)
    def kread(slot, i):
        kb, s = divmod(i, 8)
        G.e.ds_read("ds_read_b128", V(vKF + 4 * (i % NKF), 4), V(vKA + s), LDS_K + slot * 16384 + kb * 8192)

    PVORD = {"dbmajor": False}

    def pv_index(j):
        if PVORD["dbmajor"]:
            db, ks = divmod(j, 4)
        else:
            ks, db = divmod(j, 4)
        return ks, db

    def vread(slot, j):
        ks, db = pv_index(j)
        fr = vVF + 4 * (j % NVF)
        for u in range(2):
            G.e.ds_read("ds_read_b64_tr_b16", V(fr + 2 * u, 2), V(vVA + db), slot * 16384 + (16 * ks + 8 * u) * 256)

    def qk_mfma(sb, i, cinit):
        kb, s = divmod(i, 8)
        d = V(sb + 16 * kb, 16)
        c = d if s > 0 else cinit
        G.e.mfma(d, V(vKF + 4 * (i % NKF), 4), V(vQ + 4 * s, 4), c)

    def pv_mfma(sb, j):
        ks, db = pv_index(j)
        p = V(sb + 8 * ks, 4)
        d = V(vO + 16 * db, 16)
        G.e.mfma(d, V(vVF + 4 * (j % NVF), 4), p, d)

    def softmax_ops(sb, ks):
        b = sb + 8 * ks
        ex = lambda i: (2, lambda: G.e.trans("v_exp_f32", V(b + i), V(b + i)))
        ad = lambda i: (1, lambda: G.e.valu("v_add_f32", V(vL0 + (i & 1)), V(vL0 + (i & 1)), V(b + i)))
        cv = lambda k: (1, lambda: G.e.valu("v_cvt_pk_bf16_f32", V(b + k), V(b + 2 * k), V(b + 2 * k + 1)))
        return [ex(0), ex(1), ex(2), ex(3), ad(0), ad(1), ex(4), ad(2), ex(5), ad(3), cv(0), ex(6), ad(4),
                ex(7), ad(5), cv(1), ad(6), ad(7), cv(2), cv(3)]

    vM = V(vT)

    def max_ops(sb, half):
        ops = []
        b = sb + 16 * half
        if half == 0:
            ops.append((1, lambda: G.e.valu("v_max3_f32", vM, V(b), V(b + 1), V(b + 2))))
            for k in range(3, 15, 2):
                ops.append((1, lambda k=k: G.e.valu("v_max3_f32", vM, vM, V(b + k), V(b + k + 1))))
            ops.append((1, lambda: G.e.valu("v_max_f32", vM, vM, V(b + 15))))
        else:
            for k in range(0, 16, 2):
                ops.append((1, lambda k=k: G.e.valu("v_max3_f32", vM, vM, V(b + k), V(b + k + 1))))
        return ops

    def full_max():
        e = G.e
        t = V(vT + 1)
        e.valu("v_mov_b32", t, vM)
        e.ins("v_permlane32_swap_b32 %s, %s" % (vM[0], t[0]), "perm", dst=vM[1] + t[1], src=vM[1] + t[1])
        e.valu("v_max_f32", vM, vM, t)

    rare = []

    def gen_rare(lbl, ret, sb):
        e = G.e
        e.label(lbl)
        e.nop(16)
        full_max()
        e.valu("v_max_f32", vM, 0, vM)
        f = V(vT + 2)
        e.ins("v_exp_f32 %s, -%s" % (f[0], vM[0]), "trans", dst=f[1], src=vM[1])
        for i in range(32):
            e.valu("v_sub_f32", V(sb + i), V(sb + i), vM)
        for i in range(16):
            e.valu("v_sub_f32", V(vC + i), V(vC + i), vM)
        for i in range(64):
            e.valu("v_mul_f32", V(vO + i), V(vO + i), f)
        e.valu("v_mul_f32", V(vL0), V(vL0), f)
        e.valu("v_mul_f32", V(vL1), V(vL1), f)
        e.nop(4)
        e.raw("s_branch %s" % ret)

    def wo_ops(m0base_sgpr, m0_imm, soff_sgpr, off, n, tag):
        def op(i):
            def f():
                e = G.e
                e.vmtag = tag
                e.salu("s_add_u32", "m0", S(m0base_sgpr), m0_imm + (i & ~3) * 1024)
                e.raw("s_add_u32 s%d, s%d, 0x%x" % (sTMP, soff_sgpr, off + (i & ~3) * 1024))
                e.buf_dma(V(vLN), srdWO, S(sTMP), (i & 3) * 1024, woflag)
            return f
        return [op(i) for i in range(n)]

    def wo_step_reads(step):
        e = G.e
        for f in range(8):
            e.ds_read("ds_read_b128", A(32 * step + 4 * f, 4), V(vRA), f * 1024)

    QREG = [LDS_K + 0, LDS_K + 16384, LDS_V + 0, LDS_K + 32768, LDS_V + 16384, LDS_K + 49152, LDS_V + 32768, None]

    def quarter_ops(q, jbase, tag):
        j = jbase + (q >> 2)
        if QREG[q] is None:
            return wo_ops(sM0WW, 4096 if jbase == 6 else 0, sHO + j, 4096 * (q & 3), 4, tag)
        return wo_ops(sM0W, QREG[q], sHO + j, 4096 * (q & 3), 4, tag)

    def quarter_dma(q, jbase, tag):
        for f in quarter_ops(q, jbase, tag):
            f()

    def final_l():
        e = G.e
        l = V(vL0)
        t = V(vT + 1)
        e.valu("v_add_f32", l, l, V(vL1))
        e.valu("v_mov_b32", t, l)
        e.ins("v_permlane32_swap_b32 %s, %s" % (l[0], t[0]), "perm", dst=l[1] + t[1], src=l[1] + t[1])
        e.valu("v_add_f32", l, l, t)
        e.trans("v_rcp_f32", l, l)
        e.valu("v_add_u32", V(vT + 2), 4096, V(vLN))

    def pack_store(sg):
        e = G.e
        l = V(vL0)
        e.vmtag = "Ost"
        base = vO + 8 * sg
        for k in range(8):
            e.valu("v_mul_f32", V(base + k), V(base + k), l)
        fr = vQ + 4 * sg
        for k in range(4):
            e.valu("v_cvt_pk_bf16_f32", V(fr + k), V(base + 2 * k), V(base + 2 * k + 1))
        e.buf_store("buffer_store_dwordx4", V(fr, 4), V(vLN) if sg < 4 else V(vT + 2), srdWS, 0, (sg & 3) * 1024, "sc1")

    def touch_ops(dk, dv):
        def op(kind, d):
            def f():
                e = G.e
                e.vmtag = "pf"
                e.raw("s_add_u32 s%d, s%d, 0x%x" % (sTMP, sKOFF if kind == "K" else sVOFF, d * 16384))
                e.buf_load("buffer_load_dword", V(vPD), V(vPF), srdK if kind == "K" else srdV, S(sTMP), 0, o.pff)
            return f
        return [op("K", dk), op("V", dv)]

    def tile(t, mode, uid):
        e = G.e
        t4 = t % 4
        do_k = t + 4 <= 31
        do_v = t + 3 <= 31
        do_qk = t + 1 <= 31
        cur = vS + 32 * (t4 & 1)
        nxt = vS + 32 * ((t4 + 1) & 1)
        kslot = (t4 + 1) % 4
        vslot = t4 % 4
        vq = []
        marks = {}
        for ks in range(4):
            vq += softmax_ops(cur, ks)
            marks[ks] = len(vq)
        state = {"i": 0}

        def run_upto(n):
            while state["i"] < n:
                vq[state["i"]][1]()
                state["i"] += 1

        def run_budget(budget, lst, st):
            while st["i"] < len(lst) and budget > 0:
                c, fn = lst[st["i"]]
                fn()
                st["i"] += 1
                budget -= c

        if t == 31:
            run_upto(len(vq))
            if o.ovl:
                PVORD["dbmajor"] = True
                final_l()
        if o.stamp:
            e.raw("s_add_u32 s59, s59, 1")
        tags = [("K", t + 1), ("V", t)]
        if t4 == 2 and t > 2:
            tags.append(("W", t // 4 - 1))
        if t == 2:
            tags.append("cnt")
        e.wait_vm(*tags)
        e.barrier()
        if not o.notile:
            stamp(S(59))
        if t4 == 2:
            if mode == "loop":
                e.ins("v_readfirstlane_b32 s%d, v%d" % (sTMP, vCK), "rfl", dst=["s%d" % sTMP], src=["v%d" % vCK])
                e.raw("s_cmp_lt_u32 s%d, 256" % sTMP)
                e.raw("s_cbranch_scc1 L_cnt")
                e.label("L_cnt_ok")
                for k in range(6):
                    e.raw("s_cmp_eq_u32 s%d, %d" % (sCNT, k + 1))
                    e.raw("s_cbranch_scc1 L_wrd_%d" % k)
                e.label("L_wrd_ret")
            else:
                wo_step_reads(6)
                e.ldsq = []
        if t == 31:
            e.vmtag = "poll"
            e.buf_load("buffer_load_dword", vF, vFA, srdFL, 0, 0, "sc1")
        if do_qk:
            for i in range(NKF):
                kread(kslot, i)
        dq = []
        if t4 == 2:
            if mode == "loop":
                e.raw("s_lshr_b32 s%d, s%d, 1" % (sTMP2, sCNT))
                e.raw("s_add_u32 s%d, s%d, s%d" % (sTMP2, sTMP2, sROT))
                e.raw("s_and_b32 s%d, s%d, 7" % (sTMP2, sTMP2))
                e.raw("s_lshl_b32 s%d, s%d, 1" % (sTMP2, sTMP2))
                e.raw("s_and_b32 s%d, s%d, 1" % (sTMP, sCNT))
                e.raw("s_add_u32 s%d, s%d, s%d" % (sTMP2, sTMP2, sTMP))
                e.raw("s_lshl_b32 s%d, s%d, 13" % (sTMP2, sTMP2))
                dq += wo_ops(sM0WW, 0, sTMP2, 0, 8, ("W", t // 4))
            else:
                dq += wo_ops(sM0WW, 0, sHO + 3, 8192, 8, ("W", 7))
        kq = []
        if do_k:
            kq += kv_ops("K", t4 % 4, sKOFF, t + 4, post="s_add_u32 s%d, s%d, 0x4000" % (sKOFF, sKOFF))
        if do_v:
            kq += kv_ops("V", (t4 + 3) % 4, sVOFF, t + 3, post="s_add_u32 s%d, s%d, 0x4000" % (sVOFF, sVOFF))
        if o.pf and mode == "loop":
            kq += touch_ops(o.pf - 1, o.pf - 1)
        if o.wlast:
            dq = kq + dq
        else:
            dq = dq + kq
        if mode == "tail":
            qs = {28: [0], 29: [1, 2], 30: [3, 4], 31: [5, 6]}[t]
            for q in qs:
                dq += quarter_ops(q, 4, "Q45")

        nkv = len(kq) if o.wlast else 0
        gcount = {"g": 0}

        def dma_next(force=False):
            g = gcount["g"]
            gcount["g"] += 1
            if not dq:
                return
            issued_kv = len(kq) - min(len(kq), max(0, nkv - (total_dq - len(dq))))
            in_kv = (total_dq - len(dq)) < nkv
            if force or (in_kv and g % o.kstep == 0) or (not in_kv and g % o.dstep == 0):
                dq.pop(0)()
        total_dq = len(dq)
        mq0 = max_ops(nxt, 0) if do_qk else []
        mq1 = max_ops(nxt, 1) if do_qk else []
        ms0, ms1 = {"i": 0}, {"i": 0}
        if do_qk:
            run_budget(8, vq, state)
            for g in range(16):
                qk_mfma(nxt, g, V(vC, 16))
                if g + NKF < 16:
                    kread(kslot, g + NKF)
                if 6 <= g < 6 + NVF:
                    vread(vslot, g - 6)
                dma_next()
                run_budget(4, vq, state)
                if g >= 11:
                    run_budget(2, mq0, ms0)
        else:
            for j in range(NVF):
                vread(vslot, j)
        for j in range(16):
            ks = j // 4
            run_upto(marks[ks])
            pv_mfma(cur, j)
            if j + NVF < 16:
                vread(vslot, j + NVF)
            dma_next(force=not do_qk)
            if t == 31 and o.ovl and j >= 7 and j % 2 == 1:
                pack_store((j - 7) // 2)
            run_budget(4, vq, state)
            if do_qk:
                run_budget(99, mq0, ms0)
                if j >= 10:
                    run_budget(2, mq1, ms1)
        assert state["i"] == len(vq)
        assert not dq
        if do_qk:
            run_budget(99, mq1, ms1)
            e.ins("v_cmp_lt_f32 vcc, 0x%x, %s" % (f32bits(THRESH), vM[0]), "valu", dst=["vcc"], src=vM[1])
            lbl, ret = "L_rare_%s" % uid, "L_ret_%s" % uid
            e.raw("s_cbranch_vccnz %s" % lbl)
            e.label(ret)
            rare.append((lbl, ret, nxt))
        assert not e.ldsq

    raw("s_mov_b32 s%d, 0x%x" % (sTRY, f32bits(SCALE)))

    def pack_ops(db):
        ops = []
        for r in range(0, 16, 2):
            a_, b_ = V(vO + 16 * db + r), V(vO + 16 * db + r + 1)
            ops.append(lambda a_=a_: e.valu("v_mul_f32", a_, S(sTRY), a_))
            ops.append(lambda b_=b_: e.valu("v_mul_f32", b_, S(sTRY), b_))
            ops.append(lambda a_=a_, b_=b_, r=r: e.valu("v_cvt_pk_bf16_f32", V(vQ + 8 * db + r // 2), a_, b_))
        return ops

    def zero_ops(db):
        return [lambda i=i: e.valu("v_mov_b32", V(vO + 16 * db + i), 0) for i in range(16)]

    e.valu("v_mov_b32", V(vCK), 0)
    raw("s_mov_b32 s%d, 0x20000" % sTO)
    pq_ = []
    for i in range(16):
        qmf(7, i)
        if i < 8:
            qrd(7, i + 8)
        if i >= 10:
            kread(0, i - 10)
        if i % 4 == 1 and i > 4:
            pq_ += pack_ops(i // 4 - 1)
        for _ in range(6):
            if pq_:
                pq_.pop(0)()
    lq = []
    for kind, t in late_kv:
        lq += kv_init_ops(kind, t)
    pq_ += zero_ops(0) + zero_ops(1)
    for g in range(16):
        if g == 6:
            while pq_ and npack3["left"] > 0:
                pq_.pop(0)()
                npack3["left"] -= 1
        qk_mfma(vS, g, 0)
        if g + NKF < 16:
            kread(0, g + NKF)
        if lq:
            lq.pop(0)()
        if g == 1:
            p3 = pack_ops(3)
            npack3 = {"left": len(pq_) + len(p3)}
            pq_ += p3 + zero_ops(2) + zero_ops(3)
        for _ in range(7):
            if pq_:
                pq_.pop(0)()
                if g >= 1:
                    npack3["left"] -= 1
    while pq_:
        pq_.pop(0)()
    e.valu("v_mov_b32", V(vL0), 0)
    e.valu("v_mov_b32", V(vL1), 0)
    stamp(2)
    for c, fn in max_ops(vS, 0) + max_ops(vS, 1):
        fn()
    full_max()
    for i in range(32):
        e.valu("v_sub_f32", V(vS + i), V(vS + i), vM)
    for i in range(16):
        e.valu("v_sub_f32", V(vC + i), 0, vM)

    e.vmtag = "cnt"
    e.buf_load("buffer_load_dword", V(vCK), V(vCK), srdDBG, 0, 0, "sc1")
    raw("s_mov_b32 s%d, 0" % sCNT)
    stamp(3)
    if o.stamp:
        raw("s_memtime s[60:61]")
        raw("s_waitcnt lgkmcnt(0)")
        raw("v_writelane_b32 v31, s60, 6")
        raw("s_mov_b32 s59, 7")

    def body(p):
        G.e.label("L_loop")
        for t4 in range(4):
            tile(4 * p + t4, "loop", "m%d" % t4)
        G.e.raw("s_add_u32 s%d, s%d, 1" % (sCNT, sCNT))
        G.e.raw("s_cmp_lt_u32 s%d, 7" % sCNT)
        G.e.raw("s_cbranch_scc1 L_loop")

    real = G.e
    sim = copy.deepcopy(real)
    G.e = sim
    logs = []
    backs = []
    for p in range(7):
        sim.vm_log = []
        body(p)
        logs.append(list(sim.vm_log))
        backs.append(sim.snapshot())
    over = [min(l[i] for l in logs[1:]) for i in range(len(logs[0]))]
    sys.stderr.write("loop vmcnt sites: %s\n" % logs)
    G.e = real
    e = real
    rare.clear()
    e.merge(backs[0])
    e.merge(backs[-1])
    e.vm_log = []
    e.vm_over = over
    e.vm_first_sgpr = sCNT
    body(0)
    e.vm_over = None
    e.vmq = list(sim.vmq)
    for t in range(28, 32):
        tile(t, "tail", "t%d" % t)
    stamp(4)
    if o.stamp:
        raw("s_memtime s[60:61]")
        raw("s_waitcnt lgkmcnt(0)")
        raw("v_writelane_b32 v31, s60, 7")

    if not o.ovl:
        final_l()
    for sg in range(5 if o.ovl else 0, 8):
        pack_store(sg)
    vQA = 1
    e.valu("v_add_u32", V(vQA), S(sM0W), V(vLN))
    e.valu("v_add_u32", V(vQA + 1), LDS_V, V(vQA))

    def quarter_reads(q, dstfn, wup=0):
        for f in range(4):
            off = f * 1024
            if QREG[q] is None:
                addr, off = V(vRA), off + wup
            elif QREG[q] < LDS_V:
                addr, off = V(vQA), off + QREG[q]
            else:
                addr, off = V(vQA + 1), off + QREG[q] - LDS_V
            e.ds_read("ds_read_b128", dstfn(16 * q + 4 * f), addr, off)

    vW45 = 128
    vAcc = vQ
    vOB = vO

    def need_flag(j, sfx=""):
        raw("s_bitcmp1_b32 s%d, %d" % (sMASK, j))
        raw("s_cbranch_scc1 L_ok_%d" % j)
        e.label("L_spin_%d" % j)
        raw("buffer_load_dword %s, %s, s[%d:%d], 0 offen sc1" % (vF[0], vFA[0], sFL, sFL + 3))
        raw("s_waitcnt vmcnt(0)")
        raw("v_cmp_ne_u32 vcc, 0, %s" % vF[0])
        raw("s_nop 1")
        raw("s_mov_b32 s%d, vcc_lo" % sMASK)
        raw("s_bitcmp1_b32 s%d, %d" % (sMASK, j))
        raw("s_cbranch_scc1 L_ok_%d" % j)
        raw("s_sleep 1")
        raw("s_sub_u32 s%d, s%d, 1" % (sTO, sTO))
        raw("s_cmp_lg_u32 s%d, 0" % sTO)
        raw("s_cbranch_scc1 L_spin_%d" % j)
        raw("s_branch L_done")
        e.label("L_ok_%d" % j)

    def obuf(j, sg):
        if o.deep and j in (3, 7):
            return A(4 * sg, 4)
        if o.deep and j == 5:
            return A(32 + 4 * sg, 4)
        if o.deep:
            return V(vOB + (32 if j in (1, 4) else 0) + 4 * sg, 4)
        return V(vOB + 32 * (j & 1) + 4 * sg, 4)

    def o_loads(j, check=True):
        if check:
            need_flag(j)
        e.vmtag = ("O", j)
        raw("s_lshr_b32 s%d, s%d, 1" % (sR7, sHO + j))
        raw("s_add_u32 s%d, s%d, 0x1000" % (sR19, sR7))
        for sg in range(8):
            e.buf_load("buffer_load_dwordx4", obuf(j, sg), V(vLN), srdOI,
                       S(sR7 if sg < 4 else sR19), (sg & 3) * 1024, "sc1")

    def q45_reads():
        wo_step_reads(7)
        for q in range(7):
            quarter_reads(q, lambda r: V(vW45 + r, 4))

    def flag_store():
        e.wait_vm("Ost")
        e.valu("v_mov_b32", V(vT), 1)
        raw("s_mov_b64 exec, 1")
        e.vmtag = "flag"
        e.buf_store("buffer_store_dword", V(vT), V(vFZ2), srdFL, 0, 0, "sc1")
        raw("s_mov_b64 exec, -1")

    def wfrag(j, sg, nb):
        if j < 4:
            return A(64 * j + 8 * sg + 4 * nb, 4)
        if j < 6:
            return V(vW45 + 64 * (j - 4) + 8 * sg + 4 * nb, 4)
        return A(64 * (j - 6) + 8 * sg + 4 * nb, 4)

    e.wait_vm("Q45", "poll", ("W", 7))
    raw("v_cmp_ne_u32 vcc, 0, %s" % vF[0])
    raw("s_nop 1")
    raw("s_mov_b32 s%d, vcc_lo" % sMASK)
    raw("s_and_b32 s%d, s%d, 3" % (sTMP, sMASK))
    raw("s_cmp_eq_u32 s%d, 3" % sTMP)
    raw("s_cbranch_scc0 L_slow")
    fork = copy.deepcopy(e)
    o_loads(0, False)
    o_loads(1, False)
    q45_reads()
    flag_store()
    e.lgkm0()
    raw("s_mov_b32 s%d, 0" % sTRY)
    raw("s_branch L_join")
    fast_lines = e.lines
    fork.lines = fast_lines
    G.e = e = fork
    e.label("L_slow")
    q45_reads()
    flag_store()
    e.lgkm0()
    if o.early67:
        vq_save, vt_save = list(e.vmq), e.vm_total
        quarter_dma(7, 4, "Q67e")
        for q in range(8):
            quarter_dma(q, 6, "Q67e")
        e.vmq, e.vm_total = vq_save, vt_save
        raw("s_mov_b32 s%d, 1" % sTRY)
    o_loads(0)
    o_loads(1)
    e.label("L_join")
    e.nop(2)
    stamp(50)
    dq = quarter_ops(7, 4, "Q67")
    for q in range(8):
        dq += quarter_ops(q, 6, "Q67")
    for j in range(0 if o.deep else 8):
        e.wait_vm(("O", j))
        if j == 0:
            stamp(51)
        for sg in range(8):
            for nb in range(2):
                d = V(vAcc + 16 * nb, 16)
                e.mfma(d, wfrag(j, sg, nb), V(vOB + 32 * (j & 1) + 4 * sg, 4), 0 if (j == 0 and sg == 0) else d)
                if dq and (nb == 0 or j > 0):
                    if o.early67:
                        lbl = "L_sk67_%d" % len(dq)
                        raw("s_cmp_eq_u32 s%d, 1" % sTRY)
                        raw("s_cbranch_scc1 %s" % lbl)
                        vq_save, vt_save = list(e.vmq), e.vm_total
                        dq.pop(0)()
                        e.vmq, e.vm_total = vq_save, vt_save
                        q67_mark = e.vm_total
                        e.label(lbl)
                    else:
                        dq.pop(0)()
        if j + 2 < 8:
            o_loads(j + 2)
        if j == 3:
            assert not dq
            if o.early67:
                raw("s_waitcnt vmcnt(%d)" % (e.vm_total - q67_mark))
            else:
                e.wait_vm("Q67")
            quarter_reads(7, lambda r: V(vW45 + r, 4))
            for q in range(8):
                quarter_reads(q, lambda r: A(r, 4), wup=4096)
    stamp(52)
    wa = V(7)
    e.valu("v_add_u32", wa, S(sM0WW), V(vLN))
    for q in range(8):
        e.ds_write("ds_write_b128", wa, V(vAcc + 4 * q, 4), q * 1024)
    e.lgkm0()
    e.barrier()
    raw("s_lshl_b32 s%d, s%d, 11" % (sTMP, sW))
    raw("s_add_u32 s%d, s%d, 0x%x" % (sTMP, sTMP, LDS_W))
    ra = V(8)
    e.valu("v_add_u32", ra, S(sTMP), V(vLN))
    for k in range(2):
        for ww in range(4):
            e.ds_read("ds_read_b128", V(64 + 16 * k + 4 * ww, 4), ra, ww * 8192 + k * 1024)
    oa = V(9)
    e.valu("v_bfe_u32", oa, V(vLN), 4, 5)
    e.valu("v_lshlrev_b32", oa, 10, oa)
    e.valu("v_lshrrev_b32", V(10), 9, V(vLN))
    e.valu("v_lshl_add_u32", oa, V(10), 3, oa)
    raw("s_lshl_b32 s%d, s%d, 5" % (sTMP, sW))
    e.valu("v_add_u32", oa, S(sTMP), oa)
    for k in range(2):
        b = 64 + 16 * k
        for c in range(4):
            e.valu("v_add_f32", V(b + c), V(b + c), V(b + 4 + c))
            e.valu("v_add_f32", V(b + 8 + c), V(b + 8 + c), V(b + 12 + c))
            e.valu("v_add_f32", V(b + c), V(b + c), V(b + 8 + c))
        e.valu("v_cvt_pk_bf16_f32", V(12 + 2 * k), V(b), V(b + 1))
        e.valu("v_cvt_pk_bf16_f32", V(13 + 2 * k), V(b + 2), V(b + 3))
        e.buf_store("buffer_store_dwordx2", V(12 + 2 * k, 2), oa, srdOUT, 0, 16 * k)
    if o.stamp:
        e.vmcnt(0)
        stamp(5)
        if o.sdbg:
            for i, idx in enumerate([0, 1, 46, 2, 3, 16, 24, 32, 4, 50, 51, 52, 5]):
                raw("v_readlane_b32 s47, v31, %d" % idx)
                raw("s_nop 3")
                raw("v_writelane_b32 v29, s47, %d" % (1 + i))
            raw("v_readlane_b32 s47, v31, 0")
            raw("s_nop 3")
            raw("s_not_b32 s47, s47")
            raw("v_writelane_b32 v29, s47, 15")
            raw("v_readlane_b32 s47, v31, 4")
            raw("s_nop 3")
            raw("s_not_b32 s47, s47")
            raw("v_writelane_b32 v29, s47, 14")
            e.valu("v_lshrrev_b32", V(30), 2, V(vLN))
            raw("s_mov_b64 exec, 0xfffe")
            raw("buffer_atomic_umax v29, v30, s[%d:%d], 0 offen sc1" % (sDBG, sDBG + 3))
            raw("s_mov_b64 exec, -1")
            raw("s_branch L_done")
        raw("s_lshl_b32 s47, s2, 2")
        raw("s_add_u32 s47, s47, s%d" % sW)
        raw("s_lshl_b32 s47, s47, 8")
        raw("s_add_u32 s47, s47, 0x%x" % STAMP_OFF)
        raw("s_add_u32 s92, s18, s47")
        raw("s_addc_u32 s93, s19, 0")
        raw("s_mov_b32 s94, 256")
        raw("s_mov_b32 s95, 0x20000")
        e.valu("v_lshrrev_b32", V(30), 2, V(vLN))
        e.buf_store("buffer_store_dword", V(31), V(30), S(92, 4), 0, 0)
    e.label("L_done")
    raw("s_endpgm")
    for lbl, ret, sb in rare:
        gen_rare(lbl, ret, sb)
    e.label("L_cnt")
    raw("s_sleep 8")
    raw("v_mov_b32 v%d, 0" % vCK)
    raw("buffer_load_dword v%d, v%d, s[%d:%d], 0 offen sc1" % (vCK, vCK, sDBG, sDBG + 3))
    raw("s_waitcnt vmcnt(0)")
    raw("v_readfirstlane_b32 s%d, v%d" % (sTMP, vCK))
    raw("s_cmp_ge_u32 s%d, 256" % sTMP)
    raw("s_cbranch_scc1 L_cnt_ok")
    raw("s_sub_u32 s%d, s%d, 1" % (sTO, sTO))
    raw("s_cmp_lg_u32 s%d, 0" % sTO)
    raw("s_cbranch_scc1 L_cnt")
    raw("s_branch L_done")
    for k in range(6):
        e.label("L_wrd_%d" % k)
        wo_step_reads(k)
        e.ldsq = []
        raw("s_branch L_wrd_ret")
    return e


def build(o):
    a = gen(o)
    out = HEADER
    out += "; @launch grid=(256,1,1) block=(256,1,1) lds=163840\n"
    out += '.amdgcn_target "amdgcn-amd-amdhsa--gfx950"\n.text\n'
    out += ".globl %s\n.p2align 8\n.type %s,@function\n%s:\n" % (NAME, NAME, NAME)
    out += a.text()
    out += '.section .rodata,"a"\n'
    out += """.p2align 6
.amdhsa_kernel %s
  .amdhsa_next_free_vgpr 512
  .amdhsa_next_free_sgpr 100
  .amdhsa_accum_offset 256
  .amdhsa_group_segment_fixed_size 0
  .amdhsa_kernarg_size 64
  .amdhsa_user_sgpr_count 2
  .amdhsa_user_sgpr_kernarg_segment_ptr 1
  .amdhsa_system_sgpr_workgroup_id_x 1
.end_amdhsa_kernel
""" % NAME
    sys.stderr.write("%s nops=%d\n" % (a.count, a.nops))
    return out


if __name__ == "__main__":
    o = Opt()
    for arg in sys.argv[2:]:
        k, v = arg.split("=")
        setattr(o, k, v if k in ("kf", "vf", "wof", "pff", "xf") else int(v))
    open(sys.argv[1], "w").write(build(o))
```
